```python
import torch

def _softmax(x, axis=-1):
    return torch.softmax(x, dim=axis)
def _gelu(x):
    return torch.nn.functional.gelu(x, approximate="tanh")
def _silu(x):
    return torch.nn.functional.silu(x)
def _sigmoid(x):
    return torch.sigmoid(x)
def _layernorm(x, axis=-1, eps=1e-5):
    m = x.mean(dim=axis, keepdim=True)
    v = x.var(dim=axis, keepdim=True, unbiased=False)
    return (x - m) / torch.sqrt(v + eps)
def _scatter_add(tgt, idx, src, axis=0):
    return tgt.clone().index_add_(axis, idx, src)
def _segment_sum(src, seg, n):
    out = torch.zeros((n,) + src.shape[1:], dtype=src.dtype)
    return out.index_add_(0, seg, src)
def _pad(x, pw):
    flat = tuple(v for pair in reversed(pw) for v in pair)
    return torch.nn.functional.pad(x, flat)

kernel_name = 'standalone__fm_second_order__recsys'

def setup_inputs():

    _w = (lambda a: (lambda t: t.to(torch.bfloat16) if t.is_floating_point() else t)(torch.as_tensor(a)))
    B, F, D, V = 4096, 26, 128, min(1000000, 100000)
    return {
        "idx": _w((lambda lo, hi, *s: torch.randint(lo, hi, s))(0, V, B, F).to(torch.int64)),
        "table": _w((lambda *s: torch.randn(*s, dtype=torch.bfloat16) * 0.05)(V, D)),
    }

def reference(idx, table):
    emb = table[idx]
    sum_sq = emb.sum(axis=1) ** 2
    sq_sum = (emb ** 2).sum(axis=1)
    return 0.5 * (sum_sq - sq_sum).sum(axis=-1)
```

```python
import sys, argparse

NAME = "standalone__fm_second_order__recsys"
B, F, D, V = 4096, 26, 128, 100000

HEADER = """; Kernarg layout for this problem (40 bytes, ptrs only, base s[0:1]):
; @launch grid=({grid},1,1) block=({block},1,1) lds={lds}
.amdgcn_target "amdgcn-amd-amdhsa--gfx950"
.text
.globl {name}_kernel
.p2align 8
.type {name}_kernel,@function
{name}_kernel:
"""

FOOTER = """
.section .rodata,"a"
.p2align 6
.amdhsa_kernel {name}_kernel
  .amdhsa_next_free_vgpr {vgpr}
  .amdhsa_next_free_sgpr {sgpr}
  .amdhsa_accum_offset {accum}
  .amdhsa_group_segment_fixed_size 0
  .amdhsa_kernarg_size 40
  .amdhsa_user_sgpr_count 2
  .amdhsa_user_sgpr_kernarg_segment_ptr 1
  .amdhsa_system_sgpr_workgroup_id_x 1
.end_amdhsa_kernel
"""


def gen_v4_spw2(waves=8, lds=0, hint="", idxhint="", neg=True, stamps=False, dbl=False, hops=0, hopsz=64, amp=(0,5,4), skipmask=0):
    o = []
    e = o.append
    nwg = B // (2 * waves)
    spwg = 2 * waves
    def stamp(k):
        if stamps:
            e(f"    s_memrealtime s[{40+2*k}:{41+2*k}]")
    stamp(0)
    if stamps == 1:
        e("    s_load_dwordx2 s[60:61], s[0:1], 32")
    if stamps == 2:
        e("    s_load_dwordx2 s[60:61], s[0:1], 24")
    e("    s_load_dwordx4 s[4:7], s[0:1], 0")
    e("    s_load_dwordx2 s[8:9], s[0:1], 16")
    e(f"    s_cmp_ge_u32 s2, {nwg}")
    e("    s_cbranch_scc1 L_end")
    if skipmask:
        e(f"    s_and_b32 s3, s2, {skipmask}")
        e("    s_cbranch_scc1 L_end")
    for h in range(hops):
        e(f"    s_branch L_hop{h}")
        e(f"    .p2align {hopsz.bit_length()-1}")
        e(f"L_hop{h}:")
    e("    v_bfe_u32 v1, v0, 3, 1")
    e("    v_lshrrev_b32 v2, 6, v0")
    e("    v_lshl_add_u32 v1, v2, 1, v1            ; sample_local")
    e("    v_bfe_u32 v3, v0, 5, 1")
    e("    v_lshl_add_u32 v1, v1, 1, v3")
    e("    v_mul_u32_u24 v1, 52, v1")
    e(f"    s_mul_i32 s3, s2, {spwg*104}")
    e(f"    s_mov_b32 s14, {B*F*4}")
    e("    s_mov_b32 s15, 0x00020000")
    e(f"    s_mov_b32 s18, {V*256}")
    e("    s_mov_b32 s19, 0x00020000")
    e("    s_waitcnt lgkmcnt(0)")
    stamp(1)
    e("    s_mov_b32 s12, s4")
    e("    s_mov_b32 s13, s5")
    e(f"    buffer_load_dwordx4 v[8:11], v1, s[12:15], s3 offen {idxhint}")
    e(f"    buffer_load_dwordx4 v[12:15], v1, s[12:15], s3 offen offset:16 {idxhint}")
    e(f"    buffer_load_dwordx4 v[16:19], v1, s[12:15], s3 offen offset:32 {idxhint}")
    e(f"    buffer_load_dword v20, v1, s[12:15], s3 offen offset:48 {idxhint}")
    e("    s_mov_b32 s16, s6")
    e("    s_mov_b32 s17, s7")
    e("    s_mov_b32 s20, s8")
    e("    s_mov_b32 s21, s9")
    e(f"    s_mov_b32 s22, {B*2}")
    e("    s_mov_b32 s23, 0x00020000")
    e("    v_and_b32 v4, 7, v0")
    e("    v_lshlrev_b32 v4, 4, v4")
    e("    v_bfe_u32 v5, v0, 4, 1")
    e("    v_lshl_add_u32 v4, v5, 7, v4")
    e("    v_bfe_u32 v6, v0, 3, 1")
    e("    v_cmp_eq_u32 vcc, v5, v6")
    e("    v_and_b32 v7, 1, v0")
    e("    v_lshlrev_b32 v7, 4, v7")
    e("    v_mov_b32 v21, 0x3f80")
    e("    v_lshlrev_b32 v7, v7, v21               ; 0x3f80 << (16*bit0)")
    e("    v_cndmask_b32 v7, 0, v7, vcc")
    e("    v_bfe_u32 v6, v0, 1, 2")
    for r in range(4):
        e(f"    v_cmp_eq_u32 vcc, {r}, v6")
        e("    s_nop 1")
        e(f"    v_cndmask_b32 v{24+r}, 0, v7, vcc")
    for r in range(28, 36):
        e(f"    v_mov_b32 v{r}, 0")
    e("    v_lshl_add_u32 v2, v2, 1, v3")
    e("    v_lshlrev_b32 v2, 1, v2")
    e(f"    s_mul_i32 s24, s2, {spwg*2}")
    for r in range(4):
        m = (1 << r) | (1 << (20 + r)) | (1 << (40 + r)) | (1 << (60 + r))
        e(f"    s_mov_b32 s{26+2*r}, 0x{m & 0xffffffff:08x}")
        e(f"    s_mov_b32 s{27+2*r}, 0x{m >> 32:08x}")
    e(f"    s_mov_b32 s25, {V}")
    DATA = 36
    for i in range(13):
        if i == 0:
            e("    s_waitcnt vmcnt(3)")
            stamp(2)
        elif i == 4:
            e("    s_waitcnt vmcnt(6)")
        elif i == 8:
            e("    s_waitcnt vmcnt(9)")
        elif i == 12:
            e("    s_waitcnt vmcnt(12)")
        vi = 8 + i
        if neg:
            e(f"    v_add_u32 v21, s25, v{vi}")
            e(f"    v_min_u32 v{vi}, v{vi}, v21")
        if dbl:
            e(f"    v_add_u32 v21, 50000, v{vi}")
            e(f"    v_subrev_u32 v22, s25, v21")
            e(f"    v_min_u32 v21, v22, v21")
            e(f"    v_lshl_add_u32 v{100+i}, v21, 8, v4")
        e(f"    v_lshl_add_u32 v{vi}, v{vi}, 8, v4")
        d = DATA + 4 * i
        e(f"    buffer_load_dwordx4 v[{d}:{d+3}], v{vi}, s[16:19], 0 offen {hint}")
    if dbl:
        for i in range(13):
            e(f"    buffer_load_dwordx4 v[{120+4*i}:{123+4*i}], v{100+i}, s[16:19], 0 offen {hint}")
        e("    s_waitcnt vmcnt(0)")
    for i in range(13):
        d = DATA + 4 * i
        if i == 0:
            stamp(3)
        e(f"    s_waitcnt vmcnt({12-i})")
        if i == 0:
            stamp(4)
        if i == 12:
            stamp(5)
        e(f"    v_mfma_f32_16x16x32_bf16 v[32:35], v[{d}:{d+3}], v[{d}:{d+3}], v[32:35]")
        e(f"    v_mfma_f32_16x16x32_bf16 v[28:31], v[{d}:{d+3}], v[24:27], v[28:31]")
    e("    s_nop 6")
    e("    v_cndmask_b32 v5, 0, v32, s[26:27]")
    e("    v_cndmask_b32 v5, v5, v33, s[28:29]")
    e("    v_cndmask_b32 v5, v5, v34, s[30:31]")
    e("    v_cndmask_b32 v5, v5, v35, s[32:33]")
    e("    v_fma_f32 v5, v28, v28, -v5")
    e("    v_fmac_f32 v5, v29, v29")
    e("    v_fmac_f32 v5, v30, v30")
    e("    v_fmac_f32 v5, v31, v31")
    e("    s_nop 1")
    e("    v_add_f32_dpp v5, v5, v5 row_shr:1 row_mask:0xf bank_mask:0xf bound_ctrl:0")
    e("    s_nop 1")
    e("    v_add_f32_dpp v5, v5, v5 row_shr:2 row_mask:0xf bank_mask:0xf bound_ctrl:0")
    e("    s_nop 1")
    e("    v_add_f32_dpp v5, v5, v5 row_shr:4 row_mask:0xf bank_mask:0xf bound_ctrl:0")
    e("    s_nop 1")
    e("    v_add_f32_dpp v5, v5, v5 row_shr:8 row_mask:0xf bank_mask:0xf bound_ctrl:0")
    e("    s_nop 1")
    e("    v_add_f32_dpp v5, v5, v5 row_bcast:15 row_mask:0xa bank_mask:0xf")
    e("    s_mov_b32 exec_lo, 0x80000000")
    e("    s_mov_b32 exec_hi, 0x80000000")
    e("    v_mul_f32 v5, 0.5, v5")
    e("    v_cvt_pk_bf16_f32 v5, v5, v5")
    e("    buffer_store_short v5, v2, s[20:23], s24 offen")
    if stamps == 3:
        stamp(6)
        a_, b_, K = amp
        e("    s_waitcnt lgkmcnt(0)")
        e(f"    s_sub_u32 s56, s{40+2*b_}, s{40+2*a_}")
        e(f"    s_mul_i32 s56, s56, {K}")
        e("    s_min_u32 s56, s56, 20000")
        e("L_spin:")
        e("    s_sleep 4")
        e("    s_memrealtime s[58:59]")
        e("    s_waitcnt lgkmcnt(0)")
        e("    s_sub_u32 s57, s58, s52")
        e("    s_cmp_lt_u32 s57, s56")
        e("    s_cbranch_scc1 L_spin")
    if stamps == 2:
        stamp(6)
        e("    s_mov_b32 s62, 256")
        e("    s_mov_b32 s63, 0x00020000")
        e("    s_mov_b64 exec, -1")
        e("    v_readfirstlane_b32 s56, v0")
        e("    v_and_b32 v1, 63, v0")
        e("    v_lshlrev_b32 v1, 2, v1")
        e("    v_mov_b32 v8, 0")
        e("    s_lshr_b32 s56, s56, 6")
        e("    s_and_b32 s56, s56, 7")
        e("    s_cmp_eq_u32 s56, 0")
        e("    s_cbranch_scc1 L_dodbg")
        e("    s_cmp_eq_u32 s56, 7")
        e("    s_cbranch_scc0 L_end")
        e("L_dodbg:")
        e("    s_waitcnt lgkmcnt(0)")
        for k in range(7):
            e(f"    v_writelane_b32 v8, s{40+2*k}, {k}")
            e(f"    s_not_b32 s57, s{40+2*k}")
            e(f"    v_writelane_b32 v8, s57, {8+k}")
        e("    s_mov_b64 exec, 0x7f7f")
        e("    buffer_atomic_umax v8, v1, s[60:63], 0 offen")
    if stamps == 1:
        stamp(6)
        e("    s_getreg_b32 s54, hwreg(HW_REG_XCC_ID)")
        e("    s_getreg_b32 s55, hwreg(HW_REG_HW_ID)")
        e("    s_mov_b32 s62, 0x10000000")
        e("    s_mov_b32 s63, 0x00020000")
        e("    s_waitcnt lgkmcnt(0)")
        e("    s_mov_b64 exec, 1")
        for k in range(7):
            e(f"    v_mov_b32 v{8+k}, s{40+2*k}")
        e("    v_mov_b32 v15, s54")
        e("    v_mov_b32 v16, s55")
        e("    v_mov_b32 v17, s41")
        e("    v_mov_b32 v18, 0")
        e("    v_mov_b32 v19, 0")
        e("    v_lshrrev_b32 v1, 6, v0")
        e(f"    s_mul_i32 s3, s2, {waves*64}")
        e("    v_lshlrev_b32 v1, 6, v1")
        e("    buffer_store_dwordx4 v[8:11], v1, s[60:63], s3 offen")
        e("    buffer_store_dwordx4 v[12:15], v1, s[60:63], s3 offen offset:16")
        e("    buffer_store_dwordx4 v[16:19], v1, s[60:63], s3 offen offset:32")
    e("L_end:")
    e("    s_endpgm")
    vg = DATA + 52 if not dbl else 172
    return (HEADER.format(grid=nwg, block=64 * waves, lds=lds, name=NAME) + "\n".join(o)
            + FOOTER.format(name=NAME, vgpr=vg, sgpr=(64 if stamps else 40), accum=(vg + 3) // 4 * 4))


if __name__ == "__main__":
    ap = argparse.ArgumentParser()
    ap.add_argument("--kind", default="v4_spw2")
    ap.add_argument("--waves", type=int, default=8)
    ap.add_argument("--lds", type=int, default=0)
    ap.add_argument("--hint", default="")
    ap.add_argument("--idxhint", default="")
    ap.add_argument("--stamps", type=int, default=0)
    ap.add_argument("--dbl", action="store_true")
    ap.add_argument("--hops", type=int, default=0)
    ap.add_argument("--hopsz", type=int, default=64)
    ap.add_argument("--amp", default="0,5,4")
    ap.add_argument("--skipmask", type=int, default=0)
    ap.add_argument("-o", default="/dev/stdout")
    a = ap.parse_args()
    if a.kind == "v4_spw2":
        s = gen_v4_spw2(a.waves, a.lds, a.hint, a.idxhint, stamps=a.stamps, dbl=a.dbl, hops=a.hops, hopsz=a.hopsz, amp=tuple(int(x) for x in a.amp.split(",")), skipmask=a.skipmask)
    open(a.o, "w").write(s)
```

```python
import sys
sys.path.insert(0,'gen')
import gen
s = gen.gen_v4_spw2()
lines = s.split("\n")
out = []
for ln in lines:
    out.append(ln)
    if ln.strip().startswith("buffer_store_short"):
        out += """
    s_cmp_lg_u32 s2, 0
    s_cbranch_scc1 L_end
    s_mov_b64 exec, 1
    v_readfirstlane_b32 s40, v0
    s_nop 3
    s_cmp_lg_u32 s40, 0
    s_cbranch_scc1 L_end
    s_load_dwordx2 s[60:61], s[0:1], 24
    s_mov_b32 s62, 256
    s_mov_b32 s63, 0x00020000
    s_getreg_b32 s54, hwreg(HW_REG_XCC_ID)
    s_sleep 127
    s_sleep 127
    s_sleep 127
    s_waitcnt lgkmcnt(0) vmcnt(0)
    s_mov_b32 s41, 0          ; region
L_reg:
    ; min over 8 probes for class0 (bit13=0) and class1
    s_mov_b32 s42, 0xffff     ; min0
    s_mov_b32 s43, 0xffff     ; min1
    s_mov_b32 s44, 0          ; probe
L_pr:
    s_lshl_b32 s45, s41, 21
    s_lshl_b32 s46, s44, 14
    s_add_u32 s45, s45, s46
    s_add_u32 s45, s45, 0x300
    v_mov_b32 v1, s45
    s_memtime s[48:49]
    s_waitcnt lgkmcnt(0)
    buffer_load_dword v3, v1, s[16:19], 0 offen
    s_waitcnt vmcnt(0)
    s_memtime s[50:51]
    s_waitcnt lgkmcnt(0)
    s_sub_u32 s47, s50, s48
    s_cmp_lt_u32 s47, 330
    s_cselect_b32 s47, 0xffff, s47
    s_min_u32 s42, s42, s47
    v_add_u32 v1, 0x2000, v1
    s_memtime s[48:49]
    s_waitcnt lgkmcnt(0)
    buffer_load_dword v3, v1, s[16:19], 0 offen
    s_waitcnt vmcnt(0)
    s_memtime s[50:51]
    s_waitcnt lgkmcnt(0)
    s_sub_u32 s47, s50, s48
    s_cmp_lt_u32 s47, 330
    s_cselect_b32 s47, 0xffff, s47
    s_min_u32 s43, s43, s47
    s_add_u32 s44, s44, 1
    s_cmp_lt_u32 s44, 12
    s_cbranch_scc1 L_pr
    s_lshl_b32 s43, s43, 16
    s_or_b32 s42, s42, s43
    v_mov_b32 v3, s42
    s_lshl_b32 s45, s41, 2
    v_mov_b32 v1, s45
    buffer_store_dword v3, v1, s[60:63], 0 offen
    s_add_u32 s41, s41, 1
    s_cmp_lt_u32 s41, 13
    s_cbranch_scc1 L_reg
    v_mov_b32 v3, s54
    v_mov_b32 v1, 52
    buffer_store_dword v3, v1, s[60:63], 0 offen
    v_mov_b32 v3, s6
    v_mov_b32 v1, 56
    buffer_store_dword v3, v1, s[60:63], 0 offen
    v_mov_b32 v3, s4
    v_mov_b32 v1, 60
    buffer_store_dword v3, v1, s[60:63], 0 offen
""".split("\n")
s = "\n".join(out).replace(".amdhsa_next_free_sgpr 40", ".amdhsa_next_free_sgpr 64")
open(sys.argv[1], "w").write(s)
```

```python
import sys, argparse

NAME = "standalone__fm_second_order__recsys"
B, F, D, V = 4096, 26, 128, 100000

HEADER = """; Kernarg layout for this problem (40 bytes, ptrs only, base s[0:1]):
; @launch grid=({grid},1,1) block=({block},1,1) lds={lds}
.amdgcn_target "amdgcn-amd-amdhsa--gfx950"
.text
.globl {name}_kernel
.p2align 8
.type {name}_kernel,@function
{name}_kernel:
"""

FOOTER = """
.section .rodata,"a"
.p2align 6
.amdhsa_kernel {name}_kernel
  .amdhsa_next_free_vgpr {vgpr}
  .amdhsa_next_free_sgpr {sgpr}
  .amdhsa_accum_offset {accum}
  .amdhsa_group_segment_fixed_size 0
  .amdhsa_kernarg_size 40
  .amdhsa_user_sgpr_count 2
  .amdhsa_user_sgpr_kernarg_segment_ptr 1
  .amdhsa_system_sgpr_workgroup_id_x 1
.end_amdhsa_kernel
"""


def gamp_start(e):
    e("    s_mov_b32 s62, 256")
    e("    s_mov_b32 s63, 0x00020000")
    e("    s_not_b32 s57, s40")
    e("    v_mov_b32 v5, s57")
    e("    v_min_u32 v6, 1, v0")
    e("    v_lshlrev_b32 v6, 12, v6")
    e("    s_mov_b64 exec, 1")
    e("    buffer_atomic_umax v5, v6, s[60:63], 0 offen sc1")
    e("    s_mov_b64 exec, -1")


def gamp_end2(e, K, xcc, x):
    if xcc >= 0:
        e("    s_getreg_b32 s54, hwreg(HW_REG_XCC_ID)")
        e("    s_and_b32 s54, s54, 15")
        e(f"    s_cmp_lg_u32 s54, {xcc}")
        e("    s_cbranch_scc1 L_end")
    e("    s_mov_b64 exec, 1")
    e("    v_mov_b32 v6, 0")
    e("    s_sleep 127")
    e("    buffer_load_dword v5, v6, s[60:63], 0 offen sc0 sc1")
    e("    s_waitcnt vmcnt(0) lgkmcnt(0)")
    e("    v_readfirstlane_b32 s57, v5")
    e("    s_nop 3")
    e("    s_not_b32 s57, s57")
    e(f"    s_sub_u32 s56, s{40+2*x}, s57")
    e(f"    s_mul_i32 s56, s56, {K}")
    e("    s_add_u32 s56, s56, 1500")
    e("    s_min_u32 s56, s56, 20000")
    e("L_spin:")
    e("    s_sleep 4")
    e("    s_memrealtime s[58:59]")
    e("    s_waitcnt lgkmcnt(0)")
    e("    s_sub_u32 s55, s58, s57")
    e("    s_cmp_lt_u32 s55, s56")
    e("    s_cbranch_scc1 L_spin")


def gamp_end(e, K, sel):
    if sel:
        e("    s_getreg_b32 s54, hwreg(HW_REG_XCC_ID)")
        e("    s_and_b32 s54, s54, 4")
        e(f"    s_cbranch_scc{1 if sel == 1 else 0} L_end")
    e("    s_mov_b64 exec, 1")
    e("    v_mov_b32 v6, 0")
    e("    s_sleep 127")
    e("    buffer_load_dword v5, v6, s[60:63], 0 offen sc0 sc1")
    e("    s_waitcnt vmcnt(0) lgkmcnt(0)")
    e("    v_readfirstlane_b32 s57, v5")
    e("    s_nop 3")
    e("    s_not_b32 s57, s57")
    e("    s_sub_u32 s56, s52, s57")
    e(f"    s_mul_i32 s56, s56, {K+1}")
    e("    s_min_u32 s56, s56, 20000")
    e("L_spin:")
    e("    s_sleep 4")
    e("    s_memrealtime s[58:59]")
    e("    s_waitcnt lgkmcnt(0)")
    e("    s_sub_u32 s55, s58, s57")
    e("    s_cmp_lt_u32 s55, s56")
    e("    s_cbranch_scc1 L_spin")


def gen_v4_spw2(waves=8, lds=0, hint="", idxhint="", neg=True, stamps=False, dbl=False, hops=0, hopsz=64, amp=(0,5,4), skipmask=0):
    o = []
    e = o.append
    nwg = B // (2 * waves)
    spwg = 2 * waves
    def stamp(k):
        if stamps:
            e(f"    s_memrealtime s[{40+2*k}:{41+2*k}]")
    stamp(0)
    if stamps == 1:
        e("    s_load_dwordx2 s[60:61], s[0:1], 32")
    if stamps in (2, 4):
        e("    s_load_dwordx2 s[60:61], s[0:1], 24")
    e("    s_load_dwordx4 s[4:7], s[0:1], 0")
    e("    s_load_dwordx2 s[8:9], s[0:1], 16")
    e(f"    s_cmp_ge_u32 s2, {nwg}")
    e("    s_cbranch_scc1 L_end")
    if skipmask:
        e(f"    s_and_b32 s3, s2, {skipmask}")
        e("    s_cbranch_scc1 L_end")
    for h in range(hops):
        e(f"    s_branch L_hop{h}")
        e(f"    .p2align {hopsz.bit_length()-1}")
        e(f"L_hop{h}:")
    e("    v_bfe_u32 v1, v0, 3, 1")
    e("    v_lshrrev_b32 v2, 6, v0")
    e("    v_lshl_add_u32 v1, v2, 1, v1            ; sample_local")
    e("    v_bfe_u32 v3, v0, 5, 1")
    e("    v_lshl_add_u32 v1, v1, 1, v3")
    e("    v_mul_u32_u24 v1, 52, v1")
    e(f"    s_mul_i32 s3, s2, {spwg*104}")
    e(f"    s_mov_b32 s14, {B*F*4}")
    e("    s_mov_b32 s15, 0x00020000")
    e(f"    s_mov_b32 s18, {V*256}")
    e("    s_mov_b32 s19, 0x00020000")
    e("    s_waitcnt lgkmcnt(0)")
    stamp(1)
    e("    s_mov_b32 s12, s4")
    e("    s_mov_b32 s13, s5")
    e(f"    buffer_load_dwordx4 v[8:11], v1, s[12:15], s3 offen {idxhint}")
    e(f"    buffer_load_dwordx4 v[12:15], v1, s[12:15], s3 offen offset:16 {idxhint}")
    e(f"    buffer_load_dwordx4 v[16:19], v1, s[12:15], s3 offen offset:32 {idxhint}")
    e(f"    buffer_load_dword v20, v1, s[12:15], s3 offen offset:48 {idxhint}")
    e("    s_mov_b32 s16, s6")
    e("    s_mov_b32 s17, s7")
    e("    s_mov_b32 s20, s8")
    e("    s_mov_b32 s21, s9")
    e(f"    s_mov_b32 s22, {B*2}")
    e("    s_mov_b32 s23, 0x00020000")
    e("    v_and_b32 v4, 7, v0")
    e("    v_lshlrev_b32 v4, 4, v4")
    e("    v_bfe_u32 v5, v0, 4, 1")
    e("    v_lshl_add_u32 v4, v5, 7, v4")
    e("    v_bfe_u32 v6, v0, 3, 1")
    e("    v_cmp_eq_u32 vcc, v5, v6")
    e("    v_and_b32 v7, 1, v0")
    e("    v_lshlrev_b32 v7, 4, v7")
    e("    v_mov_b32 v21, 0x3f80")
    e("    v_lshlrev_b32 v7, v7, v21               ; 0x3f80 << (16*bit0)")
    e("    v_cndmask_b32 v7, 0, v7, vcc")
    e("    v_bfe_u32 v6, v0, 1, 2")
    for r in range(4):
        e(f"    v_cmp_eq_u32 vcc, {r}, v6")
        e("    s_nop 1")
        e(f"    v_cndmask_b32 v{24+r}, 0, v7, vcc")
    for r in range(28, 36):
        e(f"    v_mov_b32 v{r}, 0")
    e("    v_lshl_add_u32 v2, v2, 1, v3")
    e("    v_lshlrev_b32 v2, 1, v2")
    e(f"    s_mul_i32 s24, s2, {spwg*2}")
    for r in range(4):
        m = (1 << r) | (1 << (20 + r)) | (1 << (40 + r)) | (1 << (60 + r))
        e(f"    s_mov_b32 s{26+2*r}, 0x{m & 0xffffffff:08x}")
        e(f"    s_mov_b32 s{27+2*r}, 0x{m >> 32:08x}")
    e(f"    s_mov_b32 s25, {V}")
    DATA = 36
    for i in range(13):
        if i == 0:
            e("    s_waitcnt vmcnt(3)")
            stamp(2)
        elif i == 4:
            e("    s_waitcnt vmcnt(6)")
        elif i == 8:
            e("    s_waitcnt vmcnt(9)")
        elif i == 12:
            e("    s_waitcnt vmcnt(12)")
        vi = 8 + i
        if neg:
            e(f"    v_add_u32 v21, s25, v{vi}")
            e(f"    v_min_u32 v{vi}, v{vi}, v21")
        if dbl:
            e(f"    v_add_u32 v21, 50000, v{vi}")
            e(f"    v_subrev_u32 v22, s25, v21")
            e(f"    v_min_u32 v21, v22, v21")
            e(f"    v_lshl_add_u32 v{100+i}, v21, 8, v4")
        e(f"    v_lshl_add_u32 v{vi}, v{vi}, 8, v4")
        d = DATA + 4 * i
        e(f"    buffer_load_dwordx4 v[{d}:{d+3}], v{vi}, s[16:19], 0 offen {hint}")
    if dbl:
        for i in range(13):
            e(f"    buffer_load_dwordx4 v[{120+4*i}:{123+4*i}], v{100+i}, s[16:19], 0 offen {hint}")
        e("    s_waitcnt vmcnt(0)")
    extra = 0
    if stamps == 4:
        gamp_start(e)
        extra = 1
    for i in range(13):
        d = DATA + 4 * i
        if i == 0:
            stamp(3)
        e(f"    s_waitcnt vmcnt({12-i+extra})")
        if i == 0:
            stamp(4)
        if i == 12:
            stamp(5)
        e(f"    v_mfma_f32_16x16x32_bf16 v[32:35], v[{d}:{d+3}], v[{d}:{d+3}], v[32:35]")
        e(f"    v_mfma_f32_16x16x32_bf16 v[28:31], v[{d}:{d+3}], v[24:27], v[28:31]")
    e("    s_nop 6")
    e("    v_cndmask_b32 v5, 0, v32, s[26:27]")
    e("    v_cndmask_b32 v5, v5, v33, s[28:29]")
    e("    v_cndmask_b32 v5, v5, v34, s[30:31]")
    e("    v_cndmask_b32 v5, v5, v35, s[32:33]")
    e("    v_fma_f32 v5, v28, v28, -v5")
    e("    v_fmac_f32 v5, v29, v29")
    e("    v_fmac_f32 v5, v30, v30")
    e("    v_fmac_f32 v5, v31, v31")
    e("    s_nop 1")
    e("    v_add_f32_dpp v5, v5, v5 row_shr:1 row_mask:0xf bank_mask:0xf bound_ctrl:0")
    e("    s_nop 1")
    e("    v_add_f32_dpp v5, v5, v5 row_shr:2 row_mask:0xf bank_mask:0xf bound_ctrl:0")
    e("    s_nop 1")
    e("    v_add_f32_dpp v5, v5, v5 row_shr:4 row_mask:0xf bank_mask:0xf bound_ctrl:0")
    e("    s_nop 1")
    e("    v_add_f32_dpp v5, v5, v5 row_shr:8 row_mask:0xf bank_mask:0xf bound_ctrl:0")
    e("    s_nop 1")
    e("    v_add_f32_dpp v5, v5, v5 row_bcast:15 row_mask:0xa bank_mask:0xf")
    e("    s_mov_b32 exec_lo, 0x80000000")
    e("    s_mov_b32 exec_hi, 0x80000000")
    e("    v_mul_f32 v5, 0.5, v5")
    e("    v_cvt_pk_bf16_f32 v5, v5, v5")
    e("    buffer_store_short v5, v2, s[20:23], s24 offen")
    if stamps == 4:
        e("    s_mov_b64 exec, -1")
        e("    v_readfirstlane_b32 s54, v0")
        e("    s_barrier")
        e("    s_cmp_lg_u32 s54, 0")
        e("    s_cbranch_scc1 L_end")
        stamp(6)
        if len(amp) == 4:
            gamp_end2(e, amp[2], amp[0], amp[1])
        else:
            gamp_end(e, amp[2], amp[0])
    if stamps == 3:
        stamp(6)
        a_, b_, K = amp
        e("    s_waitcnt lgkmcnt(0)")
        e(f"    s_sub_u32 s56, s{40+2*b_}, s{40+2*a_}")
        e(f"    s_mul_i32 s56, s56, {K}")
        e("    s_min_u32 s56, s56, 20000")
        e("L_spin:")
        e("    s_sleep 4")
        e("    s_memrealtime s[58:59]")
        e("    s_waitcnt lgkmcnt(0)")
        e("    s_sub_u32 s57, s58, s52")
        e("    s_cmp_lt_u32 s57, s56")
        e("    s_cbranch_scc1 L_spin")
    if stamps == 2:
        stamp(6)
        e("    s_mov_b32 s62, 256")
        e("    s_mov_b32 s63, 0x00020000")
        e("    s_mov_b64 exec, -1")
        e("    v_readfirstlane_b32 s56, v0")
        e("    v_and_b32 v1, 63, v0")
        e("    v_lshlrev_b32 v1, 2, v1")
        e("    v_mov_b32 v8, 0")
        e("    s_lshr_b32 s56, s56, 6")
        e("    s_and_b32 s56, s56, 7")
        e("    s_cmp_eq_u32 s56, 0")
        e("    s_cbranch_scc1 L_dodbg")
        e("    s_cmp_eq_u32 s56, 7")
        e("    s_cbranch_scc0 L_end")
        e("L_dodbg:")
        e("    s_waitcnt lgkmcnt(0)")
        for k in range(7):
            e(f"    v_writelane_b32 v8, s{40+2*k}, {k}")
            e(f"    s_not_b32 s57, s{40+2*k}")
            e(f"    v_writelane_b32 v8, s57, {8+k}")
        e("    s_mov_b64 exec, 0x7f7f")
        e("    buffer_atomic_umax v8, v1, s[60:63], 0 offen")
    if stamps == 1:
        stamp(6)
        e("    s_getreg_b32 s54, hwreg(HW_REG_XCC_ID)")
        e("    s_getreg_b32 s55, hwreg(HW_REG_HW_ID)")
        e("    s_mov_b32 s62, 0x10000000")
        e("    s_mov_b32 s63, 0x00020000")
        e("    s_waitcnt lgkmcnt(0)")
        e("    s_mov_b64 exec, 1")
        for k in range(7):
            e(f"    v_mov_b32 v{8+k}, s{40+2*k}")
        e("    v_mov_b32 v15, s54")
        e("    v_mov_b32 v16, s55")
        e("    v_mov_b32 v17, s41")
        e("    v_mov_b32 v18, 0")
        e("    v_mov_b32 v19, 0")
        e("    v_lshrrev_b32 v1, 6, v0")
        e(f"    s_mul_i32 s3, s2, {waves*64}")
        e("    v_lshlrev_b32 v1, 6, v1")
        e("    buffer_store_dwordx4 v[8:11], v1, s[60:63], s3 offen")
        e("    buffer_store_dwordx4 v[12:15], v1, s[60:63], s3 offen offset:16")
        e("    buffer_store_dwordx4 v[16:19], v1, s[60:63], s3 offen offset:32")
    e("L_end:")
    e("    s_endpgm")
    vg = DATA + 52 if not dbl else 172
    return (HEADER.format(grid=nwg, block=64 * waves, lds=lds, name=NAME) + "\n".join(o)
            + FOOTER.format(name=NAME, vgpr=vg, sgpr=(64 if stamps else 40), accum=(vg + 3) // 4 * 4))


def stamp_dump(e, waves):
    e("    s_getreg_b32 s54, hwreg(HW_REG_XCC_ID)")
    e("    s_getreg_b32 s55, hwreg(HW_REG_HW_ID)")
    e("    s_mov_b32 s62, 0x10000000")
    e("    s_mov_b32 s63, 0x00020000")
    e("    s_waitcnt lgkmcnt(0)")
    e("    s_mov_b64 exec, 1")
    for k in range(7):
        e(f"    v_mov_b32 v{8+k}, s{40+2*k}")
    e("    v_mov_b32 v15, s54")
    e("    v_mov_b32 v16, s55")
    e("    v_mov_b32 v17, s41")
    e("    v_mov_b32 v18, 0")
    e("    v_mov_b32 v19, 0")
    e("    v_lshrrev_b32 v1, 6, v0")
    e(f"    s_mul_i32 s3, s2, {waves*64}")
    e("    v_lshlrev_b32 v1, 6, v1")
    e("    buffer_store_dwordx4 v[8:11], v1, s[60:63], s3 offen")
    e("    buffer_store_dwordx4 v[12:15], v1, s[60:63], s3 offen offset:16")
    e("    buffer_store_dwordx4 v[16:19], v1, s[60:63], s3 offen offset:32")


def gen_s1(waves=16, lds=0, hint="", stamps=0, neg=True):
    o = []
    e = o.append
    nwg = B // waves
    def stamp(k):
        if stamps:
            e(f"    s_memrealtime s[{40+2*k}:{41+2*k}]")
    stamp(0)
    if stamps == 1:
        e("    s_load_dwordx2 s[60:61], s[0:1], 32")
    e("    s_load_dwordx4 s[4:7], s[0:1], 0")
    e("    s_load_dwordx2 s[8:9], s[0:1], 16")
    e("    v_readfirstlane_b32 s3, v0")
    e(f"    s_cmp_ge_u32 s2, {nwg}")
    e("    s_cbranch_scc1 L_end")
    e("    s_lshr_b32 s3, s3, 6")
    e(f"    s_mul_i32 s10, s2, {waves}")
    e("    s_add_u32 s10, s10, s3                  ; sample")
    e("    s_mul_i32 s11, s10, 104")
    e(f"    s_mov_b32 s18, {V*256}")
    e("    s_mov_b32 s19, 0x00020000")
    e("    v_and_b32 v1, 63, v0")
    e("    v_lshlrev_b32 v4, 2, v1                 ; lane*4")
    e("    s_waitcnt lgkmcnt(0)")
    stamp(1)
    e("    s_add_u32 s4, s4, s11")
    e("    s_addc_u32 s5, s5, 0")
    e("    s_load_dwordx16 s[64:79], s[4:5], 0")
    e("    s_load_dwordx8 s[80:87], s[4:5], 64")
    e("    s_load_dwordx2 s[88:89], s[4:5], 96")
    e("    s_mov_b32 s16, s6")
    e("    s_mov_b32 s17, s7")
    e("    s_mov_b32 s20, s8")
    e("    s_mov_b32 s21, s9")
    e(f"    s_mov_b32 s22, {B*2}")
    e("    s_mov_b32 s23, 0x00020000")
    e("    v_and_b32 v5, 15, v1")
    e("    v_lshrrev_b32 v6, 4, v1")
    e("    v_lshrrev_b32 v7, 1, v5")
    e("    v_cmp_eq_u32 vcc, v7, v6")
    e("    v_and_b32 v7, 1, v1")
    e("    v_lshlrev_b32 v7, 4, v7")
    e("    v_mov_b32 v21, 0x3f80")
    e("    v_lshlrev_b32 v7, v7, v21")
    e("    v_cndmask_b32 v24, 0, v7, vcc")
    e("    v_cndmask_b32 v25, 0, v7, vcc")
    e("    v_cndmask_b32 v26, 0, v7, vcc")
    e("    v_cndmask_b32 v27, 0, v7, vcc")
    for r in range(28, 36):
        e(f"    v_mov_b32 v{r}, 0")
    DATA = 36
    e(f"    v_mov_b32 v{DATA+26}, 0")
    e(f"    v_mov_b32 v{DATA+27}, 0")
    for r in range(4):
        m = (1 << r) | (1 << (20 + r)) | (1 << (40 + r)) | (1 << (60 + r))
        e(f"    s_mov_b32 s{26+2*r}, 0x{m & 0xffffffff:08x}")
        e(f"    s_mov_b32 s{27+2*r}, 0x{m >> 32:08x}")
    e("    s_lshl_b32 s24, s10, 1")
    e("    v_mov_b32 v2, 0")
    e("    s_waitcnt lgkmcnt(0)")
    stamp(2)
    for f in range(26):
        s = 64 + f
        e(f"    s_lshl_b32 s{s}, s{s}, 8")
        if neg:
            e(f"    s_add_u32 s25, s{s}, {V*256}")
            e(f"    s_min_u32 s{s}, s{s}, s25")
        e(f"    buffer_load_dword v{DATA+f}, v4, s[16:19], s{s} offen {hint}")
    stamp(3)
    for i in range(7):
        d = DATA + 4 * i
        e(f"    s_waitcnt vmcnt({max(0, 26-4*(i+1))})")
        if i == 0:
            stamp(4)
        if i == 6:
            stamp(5)
        e(f"    v_mfma_f32_16x16x32_bf16 v[32:35], v[{d}:{d+3}], v[{d}:{d+3}], v[32:35]")
        e(f"    v_mfma_f32_16x16x32_bf16 v[28:31], v[{d}:{d+3}], v[24:27], v[28:31]")
    e("    s_nop 6")
    e("    v_cndmask_b32 v5, 0, v32, s[26:27]")
    e("    v_cndmask_b32 v5, v5, v33, s[28:29]")
    e("    v_cndmask_b32 v5, v5, v34, s[30:31]")
    e("    v_cndmask_b32 v5, v5, v35, s[32:33]")
    e("    v_fma_f32 v5, v28, v28, -v5")
    e("    v_fmac_f32 v5, v29, v29")
    e("    v_fmac_f32 v5, v30, v30")
    e("    v_fmac_f32 v5, v31, v31")
    for sh in (1, 2, 4, 8):
        e("    s_nop 1")
        e(f"    v_add_f32_dpp v5, v5, v5 row_shr:{sh} row_mask:0xf bank_mask:0xf bound_ctrl:0")
    e("    s_nop 1")
    e("    v_add_f32_dpp v5, v5, v5 row_bcast:15 row_mask:0xa bank_mask:0xf")
    e("    s_nop 1")
    e("    v_add_f32_dpp v5, v5, v5 row_bcast:31 row_mask:0xc bank_mask:0xf")
    e("    s_mov_b32 exec_lo, 0")
    e("    s_mov_b32 exec_hi, 0x80000000")
    e("    v_mul_f32 v5, 0.5, v5")
    e("    v_cvt_pk_bf16_f32 v5, v5, v5")
    e("    buffer_store_short v5, v2, s[20:23], s24 offen")
    if stamps == 1:
        stamp(6)
        stamp_dump(e, waves)
    e("L_end:")
    e("    s_endpgm")
    vg = DATA + 28
    return (HEADER.format(grid=nwg, block=64 * waves, lds=lds, name=NAME) + "\n".join(o)
            + FOOTER.format(name=NAME, vgpr=vg, sgpr=96, accum=(vg + 3) // 4 * 4))


if __name__ == "__main__":
    ap = argparse.ArgumentParser()
    ap.add_argument("--kind", default="v4_spw2")
    ap.add_argument("--waves", type=int, default=8)
    ap.add_argument("--lds", type=int, default=0)
    ap.add_argument("--hint", default="")
    ap.add_argument("--idxhint", default="")
    ap.add_argument("--stamps", type=int, default=0)
    ap.add_argument("--dbl", action="store_true")
    ap.add_argument("--hops", type=int, default=0)
    ap.add_argument("--hopsz", type=int, default=64)
    ap.add_argument("--amp", default="0,5,4")
    ap.add_argument("--skipmask", type=int, default=0)
    ap.add_argument("-o", default="/dev/stdout")
    a = ap.parse_args()
    if a.kind == "v4_spw2":
        s = gen_v4_spw2(a.waves, a.lds, a.hint, a.idxhint, stamps=a.stamps, dbl=a.dbl, hops=a.hops, hopsz=a.hopsz, amp=tuple(int(x) for x in a.amp.split(",")), skipmask=a.skipmask)
    elif a.kind == "s1":
        s = gen_s1(a.waves, a.lds, a.hint, a.stamps)
    open(a.o, "w").write(s)
```

```python
import sys
sys.path.insert(0,'gen')
import gen
mode = sys.argv[2]
s = gen.gen_v4_spw2()
lines = s.split("\n")
out = []
done = False
for ln in lines:
    if ln.strip().startswith("s_mov_b32 s12, s4") and not done:
        done = True
        thr = {"miss": 745, "hit0": 0}.get(mode, 745)
        out += f"""
    s_memrealtime s[56:57]
    s_mov_b32 s16, s6
    s_mov_b32 s17, s7
    s_mov_b32 s58, 0           ; extra delay (10ns units)
    v_readfirstlane_b32 s40, v0
    s_nop 3
    s_or_b32 s40, s40, s2
    s_cmp_lg_u32 s40, 0
    s_cbranch_scc1 L_wait
    s_mov_b64 exec, 1
    s_mov_b32 s44, 0          ; probe
L_pr:
    s_mul_i32 s45, s44, 399104      ; 1559 rows * 256
    s_add_u32 s45, s45, 0x300
    v_mov_b32 v21, s45
    s_memtime s[48:49]
    s_waitcnt lgkmcnt(0)
    buffer_load_dword v22, v21, s[16:19], 0 offen
    s_waitcnt vmcnt(0)
    s_memtime s[50:51]
    v_add_u32 v21, 0x400, v21
    s_waitcnt lgkmcnt(0)
    s_memtime s[48:49]
    s_waitcnt lgkmcnt(0)
    buffer_load_dword v22, v21, s[16:19], 0 offen
    s_waitcnt vmcnt(0)
    s_memtime s[50:51]
    s_waitcnt lgkmcnt(0)
    s_sub_u32 s47, s50, s48
""".split("\n")
        if mode == "miss":
            out += """
    s_cmp_gt_u32 s47, 745
    s_cselect_b32 s47, 100, 0
    s_add_u32 s58, s58, s47
""".split("\n")
        elif mode == "sum":
            out += """
    s_lshr_b32 s47, s47, 3
    s_add_u32 s58, s58, s47
""".split("\n")
        elif mode == "xcc":
            out += """
    s_getreg_b32 s58, hwreg(HW_REG_XCC_ID)
    s_and_b32 s58, s58, 15
    s_mul_i32 s58, s58, 500
""".split("\n")
        elif mode == "none":
            pass
        out += """
    s_add_u32 s44, s44, 1
    s_cmp_lt_u32 s44, 64
    s_cbranch_scc1 L_pr
    s_mov_b64 exec, -1
L_wait:
    s_add_u32 s58, s58, 6000
L_wait2:
    s_sleep 8
    s_memrealtime s[48:49]
    s_waitcnt lgkmcnt(0)
    s_sub_u32 s47, s48, s56
    s_cmp_lt_u32 s47, s58
    s_cbranch_scc1 L_wait2
""".split("\n")
    out.append(ln)
s = "\n".join(out).replace(".amdhsa_next_free_sgpr 40", ".amdhsa_next_free_sgpr 64")
open(sys.argv[1], "w").write(s)
```

```python
import sys, argparse

NAME = "standalone__fm_second_order__recsys"
B, F, D, V = 4096, 26, 128, 100000

HEADER = """; Kernarg layout for this problem (40 bytes, ptrs only, base s[0:1]):
; @launch grid=({grid},1,1) block=({block},1,1) lds={lds}
.amdgcn_target "amdgcn-amd-amdhsa--gfx950"
.text
.globl {name}_kernel
.p2align 8
.type {name}_kernel,@function
{name}_kernel:
"""

FOOTER = """
.section .rodata,"a"
.p2align 6
.amdhsa_kernel {name}_kernel
  .amdhsa_next_free_vgpr {vgpr}
  .amdhsa_next_free_sgpr {sgpr}
  .amdhsa_accum_offset {accum}
  .amdhsa_group_segment_fixed_size 0
  .amdhsa_kernarg_size 40
  .amdhsa_user_sgpr_count 2
  .amdhsa_user_sgpr_kernarg_segment_ptr 1
  .amdhsa_system_sgpr_workgroup_id_x 1
.end_amdhsa_kernel
"""


def gamp_start(e):
    e("    s_mov_b32 s62, 256")
    e("    s_mov_b32 s63, 0x00020000")
    e("    s_not_b32 s57, s40")
    e("    v_mov_b32 v5, s57")
    e("    v_min_u32 v6, 1, v0")
    e("    v_lshlrev_b32 v6, 12, v6")
    e("    s_mov_b64 exec, 1")
    e("    buffer_atomic_umax v5, v6, s[60:63], 0 offen sc1")
    e("    s_mov_b64 exec, -1")


def gamp_end2(e, K, xcc, x):
    if xcc >= 0:
        e("    s_getreg_b32 s54, hwreg(HW_REG_XCC_ID)")
        e("    s_and_b32 s54, s54, 15")
        e(f"    s_cmp_lg_u32 s54, {xcc}")
        e("    s_cbranch_scc1 L_end")
    e("    s_mov_b64 exec, 1")
    e("    v_mov_b32 v6, 0")
    e("    s_sleep 127")
    e("    buffer_load_dword v5, v6, s[60:63], 0 offen sc0 sc1")
    e("    s_waitcnt vmcnt(0) lgkmcnt(0)")
    e("    v_readfirstlane_b32 s57, v5")
    e("    s_nop 3")
    e("    s_not_b32 s57, s57")
    e(f"    s_sub_u32 s56, s{40+2*x}, s57")
    e(f"    s_mul_i32 s56, s56, {K}")
    e("    s_add_u32 s56, s56, 1500")
    e("    s_min_u32 s56, s56, 20000")
    e("L_spin:")
    e("    s_sleep 4")
    e("    s_memrealtime s[58:59]")
    e("    s_waitcnt lgkmcnt(0)")
    e("    s_sub_u32 s55, s58, s57")
    e("    s_cmp_lt_u32 s55, s56")
    e("    s_cbranch_scc1 L_spin")


def gamp_end(e, K, sel):
    if sel:
        e("    s_getreg_b32 s54, hwreg(HW_REG_XCC_ID)")
        e("    s_and_b32 s54, s54, 4")
        e(f"    s_cbranch_scc{1 if sel == 1 else 0} L_end")
    e("    s_mov_b64 exec, 1")
    e("    v_mov_b32 v6, 0")
    e("    s_sleep 127")
    e("    buffer_load_dword v5, v6, s[60:63], 0 offen sc0 sc1")
    e("    s_waitcnt vmcnt(0) lgkmcnt(0)")
    e("    v_readfirstlane_b32 s57, v5")
    e("    s_nop 3")
    e("    s_not_b32 s57, s57")
    e("    s_sub_u32 s56, s52, s57")
    e(f"    s_mul_i32 s56, s56, {K+1}")
    e("    s_min_u32 s56, s56, 20000")
    e("L_spin:")
    e("    s_sleep 4")
    e("    s_memrealtime s[58:59]")
    e("    s_waitcnt lgkmcnt(0)")
    e("    s_sub_u32 s55, s58, s57")
    e("    s_cmp_lt_u32 s55, s56")
    e("    s_cbranch_scc1 L_spin")


def gen_v4_spw2(waves=8, lds=0, hint="", idxhint="", neg=True, stamps=False, dbl=False, hops=0, hopsz=64, amp=(0,5,4), skipmask=0):
    o = []
    e = o.append
    nwg = B // (2 * waves)
    spwg = 2 * waves
    def stamp(k):
        if stamps:
            e(f"    s_memrealtime s[{40+2*k}:{41+2*k}]")
    stamp(0)
    if stamps == 1:
        e("    s_load_dwordx2 s[60:61], s[0:1], 32")
    if stamps in (2, 4):
        e("    s_load_dwordx2 s[60:61], s[0:1], 24")
    e("    s_load_dwordx4 s[4:7], s[0:1], 0")
    e("    s_load_dwordx2 s[8:9], s[0:1], 16")
    e(f"    s_cmp_ge_u32 s2, {nwg}")
    e("    s_cbranch_scc1 L_end")
    if skipmask:
        e(f"    s_and_b32 s3, s2, {skipmask}")
        e("    s_cbranch_scc1 L_end")
    for h in range(hops):
        e(f"    s_branch L_hop{h}")
        e(f"    .p2align {hopsz.bit_length()-1}")
        e(f"L_hop{h}:")
    e("    v_bfe_u32 v1, v0, 3, 1")
    e("    v_lshrrev_b32 v2, 6, v0")
    e("    v_lshl_add_u32 v1, v2, 1, v1            ; sample_local")
    e("    v_bfe_u32 v3, v0, 5, 1")
    e("    v_lshl_add_u32 v1, v1, 1, v3")
    e("    v_mul_u32_u24 v1, 52, v1")
    e(f"    s_mul_i32 s3, s2, {spwg*104}")
    e(f"    s_mov_b32 s14, {B*F*4}")
    e("    s_mov_b32 s15, 0x00020000")
    e(f"    s_mov_b32 s18, {V*256}")
    e("    s_mov_b32 s19, 0x00020000")
    e("    s_waitcnt lgkmcnt(0)")
    stamp(1)
    e("    s_mov_b32 s12, s4")
    e("    s_mov_b32 s13, s5")
    e(f"    buffer_load_dwordx4 v[8:11], v1, s[12:15], s3 offen {idxhint}")
    e(f"    buffer_load_dwordx4 v[12:15], v1, s[12:15], s3 offen offset:16 {idxhint}")
    e(f"    buffer_load_dwordx4 v[16:19], v1, s[12:15], s3 offen offset:32 {idxhint}")
    e(f"    buffer_load_dword v20, v1, s[12:15], s3 offen offset:48 {idxhint}")
    e("    s_mov_b32 s16, s6")
    e("    s_mov_b32 s17, s7")
    e("    s_mov_b32 s20, s8")
    e("    s_mov_b32 s21, s9")
    e(f"    s_mov_b32 s22, {B*2}")
    e("    s_mov_b32 s23, 0x00020000")
    e("    v_and_b32 v4, 7, v0")
    e("    v_lshlrev_b32 v4, 4, v4")
    e("    v_bfe_u32 v5, v0, 4, 1")
    e("    v_lshl_add_u32 v4, v5, 7, v4")
    e("    v_bfe_u32 v6, v0, 3, 1")
    e("    v_cmp_eq_u32 vcc, v5, v6")
    e("    v_and_b32 v7, 1, v0")
    e("    v_lshlrev_b32 v7, 4, v7")
    e("    v_mov_b32 v21, 0x3f80")
    e("    v_lshlrev_b32 v7, v7, v21               ; 0x3f80 << (16*bit0)")
    e("    v_cndmask_b32 v7, 0, v7, vcc")
    e("    v_bfe_u32 v6, v0, 1, 2")
    for r in range(4):
        e(f"    v_cmp_eq_u32 vcc, {r}, v6")
        e("    s_nop 1")
        e(f"    v_cndmask_b32 v{24+r}, 0, v7, vcc")
    for r in range(28, 36):
        e(f"    v_mov_b32 v{r}, 0")
    e("    v_lshl_add_u32 v2, v2, 1, v3")
    e("    v_lshlrev_b32 v2, 1, v2")
    e(f"    s_mul_i32 s24, s2, {spwg*2}")
    for r in range(4):
        m = (1 << r) | (1 << (20 + r)) | (1 << (40 + r)) | (1 << (60 + r))
        e(f"    s_mov_b32 s{26+2*r}, 0x{m & 0xffffffff:08x}")
        e(f"    s_mov_b32 s{27+2*r}, 0x{m >> 32:08x}")
    e(f"    s_mov_b32 s25, {V}")
    DATA = 36
    for i in range(13):
        if i == 0:
            e("    s_waitcnt vmcnt(3)")
            stamp(2)
        elif i == 4:
            e("    s_waitcnt vmcnt(6)")
        elif i == 8:
            e("    s_waitcnt vmcnt(9)")
        elif i == 12:
            e("    s_waitcnt vmcnt(12)")
        vi = 8 + i
        if neg:
            e(f"    v_add_u32 v21, s25, v{vi}")
            e(f"    v_min_u32 v{vi}, v{vi}, v21")
        if dbl:
            e(f"    v_add_u32 v21, 50000, v{vi}")
            e(f"    v_subrev_u32 v22, s25, v21")
            e(f"    v_min_u32 v21, v22, v21")
            e(f"    v_lshl_add_u32 v{100+i}, v21, 8, v4")
        e(f"    v_lshl_add_u32 v{vi}, v{vi}, 8, v4")
        d = DATA + 4 * i
        e(f"    buffer_load_dwordx4 v[{d}:{d+3}], v{vi}, s[16:19], 0 offen {hint}")
    if dbl:
        for i in range(13):
            e(f"    buffer_load_dwordx4 v[{120+4*i}:{123+4*i}], v{100+i}, s[16:19], 0 offen {hint}")
        e("    s_waitcnt vmcnt(0)")
    extra = 0
    if stamps == 4:
        gamp_start(e)
        extra = 1
    for i in range(13):
        d = DATA + 4 * i
        if i == 0:
            stamp(3)
        e(f"    s_waitcnt vmcnt({12-i+extra})")
        if i == 0:
            stamp(4)
        if i == 12:
            stamp(5)
        e(f"    v_mfma_f32_16x16x32_bf16 v[32:35], v[{d}:{d+3}], v[{d}:{d+3}], v[32:35]")
        e(f"    v_mfma_f32_16x16x32_bf16 v[28:31], v[{d}:{d+3}], v[24:27], v[28:31]")
    e("    s_nop 6")
    e("    v_cndmask_b32 v5, 0, v32, s[26:27]")
    e("    v_cndmask_b32 v5, v5, v33, s[28:29]")
    e("    v_cndmask_b32 v5, v5, v34, s[30:31]")
    e("    v_cndmask_b32 v5, v5, v35, s[32:33]")
    e("    v_fma_f32 v5, v28, v28, -v5")
    e("    v_fmac_f32 v5, v29, v29")
    e("    v_fmac_f32 v5, v30, v30")
    e("    v_fmac_f32 v5, v31, v31")
    e("    s_nop 1")
    e("    v_add_f32_dpp v5, v5, v5 row_shr:1 row_mask:0xf bank_mask:0xf bound_ctrl:0")
    e("    s_nop 1")
    e("    v_add_f32_dpp v5, v5, v5 row_shr:2 row_mask:0xf bank_mask:0xf bound_ctrl:0")
    e("    s_nop 1")
    e("    v_add_f32_dpp v5, v5, v5 row_shr:4 row_mask:0xf bank_mask:0xf bound_ctrl:0")
    e("    s_nop 1")
    e("    v_add_f32_dpp v5, v5, v5 row_shr:8 row_mask:0xf bank_mask:0xf bound_ctrl:0")
    e("    s_nop 1")
    e("    v_add_f32_dpp v5, v5, v5 row_bcast:15 row_mask:0xa bank_mask:0xf")
    e("    s_mov_b32 exec_lo, 0x80000000")
    e("    s_mov_b32 exec_hi, 0x80000000")
    e("    v_mul_f32 v5, 0.5, v5")
    e("    v_cvt_pk_bf16_f32 v5, v5, v5")
    e("    buffer_store_short v5, v2, s[20:23], s24 offen")
    if stamps == 4:
        e("    s_mov_b64 exec, -1")
        e("    v_readfirstlane_b32 s54, v0")
        e("    s_barrier")
        e("    s_cmp_lg_u32 s54, 0")
        e("    s_cbranch_scc1 L_end")
        stamp(6)
        if len(amp) == 4:
            gamp_end2(e, amp[2], amp[0], amp[1])
        else:
            gamp_end(e, amp[2], amp[0])
    if stamps == 3:
        stamp(6)
        a_, b_, K = amp[:3]
        if len(amp) > 3:
            e(f"    s_cmp_lg_u32 s2, {amp[3]}")
            e("    s_cbranch_scc1 L_end")
            e("    s_mov_b64 exec, -1")
            e("    v_readfirstlane_b32 s54, v0")
            e("    s_nop 3")
            e(f"    s_cmp_lg_u32 s54, {64*amp[4]}")
            e("    s_cbranch_scc1 L_end")
        e("    s_waitcnt lgkmcnt(0)")
        e(f"    s_sub_u32 s56, s{40+2*b_}, s{40+2*a_}")
        e(f"    s_mul_i32 s56, s56, {K}")
        e("    s_min_u32 s56, s56, 20000")
        e("L_spin:")
        e("    s_sleep 4")
        e("    s_memrealtime s[58:59]")
        e("    s_waitcnt lgkmcnt(0)")
        e("    s_sub_u32 s57, s58, s52")
        e("    s_cmp_lt_u32 s57, s56")
        e("    s_cbranch_scc1 L_spin")
    if stamps == 2:
        stamp(6)
        e("    s_mov_b32 s62, 256")
        e("    s_mov_b32 s63, 0x00020000")
        e("    s_mov_b64 exec, -1")
        e("    v_readfirstlane_b32 s56, v0")
        e("    v_and_b32 v1, 63, v0")
        e("    v_lshlrev_b32 v1, 2, v1")
        e("    v_mov_b32 v8, 0")
        e("    s_lshr_b32 s56, s56, 6")
        e("    s_and_b32 s56, s56, 7")
        e("    s_cmp_eq_u32 s56, 0")
        e("    s_cbranch_scc1 L_dodbg")
        e("    s_cmp_eq_u32 s56, 7")
        e("    s_cbranch_scc0 L_end")
        e("L_dodbg:")
        e("    s_waitcnt lgkmcnt(0)")
        for k in range(7):
            e(f"    v_writelane_b32 v8, s{40+2*k}, {k}")
            e(f"    s_not_b32 s57, s{40+2*k}")
            e(f"    v_writelane_b32 v8, s57, {8+k}")
        e("    s_mov_b64 exec, 0x7f7f")
        e("    buffer_atomic_umax v8, v1, s[60:63], 0 offen")
    if stamps == 1:
        stamp(6)
        e("    s_getreg_b32 s54, hwreg(HW_REG_XCC_ID)")
        e("    s_getreg_b32 s55, hwreg(HW_REG_HW_ID)")
        e("    s_mov_b32 s62, 0x10000000")
        e("    s_mov_b32 s63, 0x00020000")
        e("    s_waitcnt lgkmcnt(0)")
        e("    s_mov_b64 exec, 1")
        for k in range(7):
            e(f"    v_mov_b32 v{8+k}, s{40+2*k}")
        e("    v_mov_b32 v15, s54")
        e("    v_mov_b32 v16, s55")
        e("    v_mov_b32 v17, s41")
        e("    v_mov_b32 v18, 0")
        e("    v_mov_b32 v19, 0")
        e("    v_lshrrev_b32 v1, 6, v0")
        e(f"    s_mul_i32 s3, s2, {waves*64}")
        e("    v_lshlrev_b32 v1, 6, v1")
        e("    buffer_store_dwordx4 v[8:11], v1, s[60:63], s3 offen")
        e("    buffer_store_dwordx4 v[12:15], v1, s[60:63], s3 offen offset:16")
        e("    buffer_store_dwordx4 v[16:19], v1, s[60:63], s3 offen offset:32")
    e("L_end:")
    e("    s_endpgm")
    vg = DATA + 52 if not dbl else 172
    return (HEADER.format(grid=nwg, block=64 * waves, lds=lds, name=NAME) + "\n".join(o)
            + FOOTER.format(name=NAME, vgpr=vg, sgpr=(64 if stamps else 40), accum=(vg + 3) // 4 * 4))


def stamp_dump(e, waves):
    e("    s_getreg_b32 s54, hwreg(HW_REG_XCC_ID)")
    e("    s_getreg_b32 s55, hwreg(HW_REG_HW_ID)")
    e("    s_mov_b32 s62, 0x10000000")
    e("    s_mov_b32 s63, 0x00020000")
    e("    s_waitcnt lgkmcnt(0)")
    e("    s_mov_b64 exec, 1")
    for k in range(7):
        e(f"    v_mov_b32 v{8+k}, s{40+2*k}")
    e("    v_mov_b32 v15, s54")
    e("    v_mov_b32 v16, s55")
    e("    v_mov_b32 v17, s41")
    e("    v_mov_b32 v18, 0")
    e("    v_mov_b32 v19, 0")
    e("    v_lshrrev_b32 v1, 6, v0")
    e(f"    s_mul_i32 s3, s2, {waves*64}")
    e("    v_lshlrev_b32 v1, 6, v1")
    e("    buffer_store_dwordx4 v[8:11], v1, s[60:63], s3 offen")
    e("    buffer_store_dwordx4 v[12:15], v1, s[60:63], s3 offen offset:16")
    e("    buffer_store_dwordx4 v[16:19], v1, s[60:63], s3 offen offset:32")


def gen_s1(waves=16, lds=0, hint="", stamps=0, neg=True):
    o = []
    e = o.append
    nwg = B // waves
    def stamp(k):
        if stamps:
            e(f"    s_memrealtime s[{40+2*k}:{41+2*k}]")
    stamp(0)
    if stamps == 1:
        e("    s_load_dwordx2 s[60:61], s[0:1], 32")
    e("    s_load_dwordx4 s[4:7], s[0:1], 0")
    e("    s_load_dwordx2 s[8:9], s[0:1], 16")
    e("    v_readfirstlane_b32 s3, v0")
    e(f"    s_cmp_ge_u32 s2, {nwg}")
    e("    s_cbranch_scc1 L_end")
    e("    s_lshr_b32 s3, s3, 6")
    e(f"    s_mul_i32 s10, s2, {waves}")
    e("    s_add_u32 s10, s10, s3                  ; sample")
    e("    s_mul_i32 s11, s10, 104")
    e(f"    s_mov_b32 s18, {V*256}")
    e("    s_mov_b32 s19, 0x00020000")
    e("    v_and_b32 v1, 63, v0")
    e("    v_lshlrev_b32 v4, 2, v1                 ; lane*4")
    e("    s_waitcnt lgkmcnt(0)")
    stamp(1)
    e("    s_add_u32 s4, s4, s11")
    e("    s_addc_u32 s5, s5, 0")
    e("    s_load_dwordx16 s[64:79], s[4:5], 0")
    e("    s_load_dwordx8 s[80:87], s[4:5], 64")
    e("    s_load_dwordx2 s[88:89], s[4:5], 96")
    e("    s_mov_b32 s16, s6")
    e("    s_mov_b32 s17, s7")
    e("    s_mov_b32 s20, s8")
    e("    s_mov_b32 s21, s9")
    e(f"    s_mov_b32 s22, {B*2}")
    e("    s_mov_b32 s23, 0x00020000")
    e("    v_and_b32 v5, 15, v1")
    e("    v_lshrrev_b32 v6, 4, v1")
    e("    v_lshrrev_b32 v7, 1, v5")
    e("    v_cmp_eq_u32 vcc, v7, v6")
    e("    v_and_b32 v7, 1, v1")
    e("    v_lshlrev_b32 v7, 4, v7")
    e("    v_mov_b32 v21, 0x3f80")
    e("    v_lshlrev_b32 v7, v7, v21")
    e("    v_cndmask_b32 v24, 0, v7, vcc")
    e("    v_cndmask_b32 v25, 0, v7, vcc")
    e("    v_cndmask_b32 v26, 0, v7, vcc")
    e("    v_cndmask_b32 v27, 0, v7, vcc")
    for r in range(28, 36):
        e(f"    v_mov_b32 v{r}, 0")
    DATA = 36
    e(f"    v_mov_b32 v{DATA+26}, 0")
    e(f"    v_mov_b32 v{DATA+27}, 0")
    for r in range(4):
        m = (1 << r) | (1 << (20 + r)) | (1 << (40 + r)) | (1 << (60 + r))
        e(f"    s_mov_b32 s{26+2*r}, 0x{m & 0xffffffff:08x}")
        e(f"    s_mov_b32 s{27+2*r}, 0x{m >> 32:08x}")
    e("    s_lshl_b32 s24, s10, 1")
    e("    v_mov_b32 v2, 0")
    e("    s_waitcnt lgkmcnt(0)")
    stamp(2)
    for f in range(26):
        s = 64 + f
        e(f"    s_lshl_b32 s{s}, s{s}, 8")
        if neg:
            e(f"    s_add_u32 s25, s{s}, {V*256}")
            e(f"    s_min_u32 s{s}, s{s}, s25")
        e(f"    buffer_load_dword v{DATA+f}, v4, s[16:19], s{s} offen {hint}")
    stamp(3)
    for i in range(7):
        d = DATA + 4 * i
        e(f"    s_waitcnt vmcnt({max(0, 26-4*(i+1))})")
        if i == 0:
            stamp(4)
        if i == 6:
            stamp(5)
        e(f"    v_mfma_f32_16x16x32_bf16 v[32:35], v[{d}:{d+3}], v[{d}:{d+3}], v[32:35]")
        e(f"    v_mfma_f32_16x16x32_bf16 v[28:31], v[{d}:{d+3}], v[24:27], v[28:31]")
    e("    s_nop 6")
    e("    v_cndmask_b32 v5, 0, v32, s[26:27]")
    e("    v_cndmask_b32 v5, v5, v33, s[28:29]")
    e("    v_cndmask_b32 v5, v5, v34, s[30:31]")
    e("    v_cndmask_b32 v5, v5, v35, s[32:33]")
    e("    v_fma_f32 v5, v28, v28, -v5")
    e("    v_fmac_f32 v5, v29, v29")
    e("    v_fmac_f32 v5, v30, v30")
    e("    v_fmac_f32 v5, v31, v31")
    for sh in (1, 2, 4, 8):
        e("    s_nop 1")
        e(f"    v_add_f32_dpp v5, v5, v5 row_shr:{sh} row_mask:0xf bank_mask:0xf bound_ctrl:0")
    e("    s_nop 1")
    e("    v_add_f32_dpp v5, v5, v5 row_bcast:15 row_mask:0xa bank_mask:0xf")
    e("    s_nop 1")
    e("    v_add_f32_dpp v5, v5, v5 row_bcast:31 row_mask:0xc bank_mask:0xf")
    e("    s_mov_b32 exec_lo, 0")
    e("    s_mov_b32 exec_hi, 0x80000000")
    e("    v_mul_f32 v5, 0.5, v5")
    e("    v_cvt_pk_bf16_f32 v5, v5, v5")
    e("    buffer_store_short v5, v2, s[20:23], s24 offen")
    if stamps == 1:
        stamp(6)
        stamp_dump(e, waves)
    e("L_end:")
    e("    s_endpgm")
    vg = DATA + 28
    return (HEADER.format(grid=nwg, block=64 * waves, lds=lds, name=NAME) + "\n".join(o)
            + FOOTER.format(name=NAME, vgpr=vg, sgpr=96, accum=(vg + 3) // 4 * 4))


if __name__ == "__main__":
    ap = argparse.ArgumentParser()
    ap.add_argument("--kind", default="v4_spw2")
    ap.add_argument("--waves", type=int, default=8)
    ap.add_argument("--lds", type=int, default=0)
    ap.add_argument("--hint", default="")
    ap.add_argument("--idxhint", default="")
    ap.add_argument("--stamps", type=int, default=0)
    ap.add_argument("--dbl", action="store_true")
    ap.add_argument("--hops", type=int, default=0)
    ap.add_argument("--hopsz", type=int, default=64)
    ap.add_argument("--amp", default="0,5,4")
    ap.add_argument("--skipmask", type=int, default=0)
    ap.add_argument("-o", default="/dev/stdout")
    a = ap.parse_args()
    if a.kind == "v4_spw2":
        s = gen_v4_spw2(a.waves, a.lds, a.hint, a.idxhint, stamps=a.stamps, dbl=a.dbl, hops=a.hops, hopsz=a.hopsz, amp=tuple(int(x) for x in a.amp.split(",")), skipmask=a.skipmask)
    elif a.kind == "s1":
        s = gen_s1(a.waves, a.lds, a.hint, a.stamps)
    open(a.o, "w").write(s)
```

```python
import sys
sys.path.insert(0,'gen')
import gen
regs = [int(x) for x in sys.argv[2].split(",")]
s = gen.gen_v4_spw2()
lines = s.split("\n")
out = []
done = False
for ln in lines:
    if ln.strip().startswith("s_mov_b32 s12, s4") and not done:
        done = True
        out += """
    s_memrealtime s[56:57]
    s_mov_b32 s16, s6
    s_mov_b32 s17, s7
    s_mov_b32 s58, 0           ; extra delay (10ns units)
    v_readfirstlane_b32 s40, v0
    s_nop 3
    s_or_b32 s40, s40, s2
    s_cmp_lg_u32 s40, 0
    s_cbranch_scc1 L_wait
    s_mov_b64 exec, 1
""".split("\n")
        for k, r in enumerate(regs):
            out += f"""
    s_mov_b32 s42, 0
    s_mov_b32 s43, 0
    s_mov_b32 s44, 0
L_pr{k}:
    s_lshl_b32 s46, s44, 14
    s_add_u32 s45, s46, {(r<<21) + 0x300}
    v_mov_b32 v21, s45
    s_memtime s[48:49]
    s_waitcnt lgkmcnt(0)
    buffer_load_dword v22, v21, s[16:19], 0 offen
    s_waitcnt vmcnt(0)
    s_memtime s[50:51]
    s_waitcnt lgkmcnt(0)
    s_sub_u32 s47, s50, s48
    s_min_u32 s47, s47, 1200
    s_add_u32 s42, s42, s47
    v_add_u32 v21, 0x2000, v21
    s_memtime s[48:49]
    s_waitcnt lgkmcnt(0)
    buffer_load_dword v22, v21, s[16:19], 0 offen
    s_waitcnt vmcnt(0)
    s_memtime s[50:51]
    s_waitcnt lgkmcnt(0)
    s_sub_u32 s47, s50, s48
    s_min_u32 s47, s47, 1200
    s_add_u32 s43, s43, s47
    s_add_u32 s44, s44, 1
    s_cmp_lt_u32 s44, 10
    s_cbranch_scc1 L_pr{k}
    s_cmp_gt_u32 s42, s43
    s_cselect_b32 s47, {400<<k}, 0
    s_add_u32 s58, s58, s47
""".split("\n")
        out += """
    s_mov_b64 exec, -1
    s_add_u32 s58, s58, 600
L_wait:
    s_add_u32 s58, s58, 6000
L_wait2:
    s_sleep 8
    s_memrealtime s[48:49]
    s_waitcnt lgkmcnt(0)
    s_sub_u32 s47, s48, s56
    s_cmp_lt_u32 s47, s58
    s_cbranch_scc1 L_wait2
""".split("\n")
    out.append(ln)
s = "\n".join(out).replace(".amdhsa_next_free_sgpr 40", ".amdhsa_next_free_sgpr 64")
open(sys.argv[1], "w").write(s)
```

```python
import sys, argparse

NAME = "standalone__fm_second_order__recsys"
B, F, D, V = 4096, 26, 128, 100000

HEADER = """; Kernarg layout for this problem (40 bytes, ptrs only, base s[0:1]):
; @launch grid=({grid},1,1) block=({block},1,1) lds={lds}
.amdgcn_target "amdgcn-amd-amdhsa--gfx950"
.text
.globl {name}_kernel
.p2align 8
.type {name}_kernel,@function
{name}_kernel:
"""

FOOTER = """
.section .rodata,"a"
.p2align 6
.amdhsa_kernel {name}_kernel
  .amdhsa_next_free_vgpr {vgpr}
  .amdhsa_next_free_sgpr {sgpr}
  .amdhsa_accum_offset {accum}
  .amdhsa_group_segment_fixed_size 0
  .amdhsa_kernarg_size 40
  .amdhsa_user_sgpr_count 2
  .amdhsa_user_sgpr_kernarg_segment_ptr 1
  .amdhsa_system_sgpr_workgroup_id_x 1
.end_amdhsa_kernel
"""


def gamp_start(e):
    e("    s_mov_b32 s62, 256")
    e("    s_mov_b32 s63, 0x00020000")
    e("    s_not_b32 s57, s40")
    e("    v_mov_b32 v5, s57")
    e("    v_min_u32 v6, 1, v0")
    e("    v_lshlrev_b32 v6, 12, v6")
    e("    s_mov_b64 exec, 1")
    e("    buffer_atomic_umax v5, v6, s[60:63], 0 offen sc1")
    e("    s_mov_b64 exec, -1")


def gamp_end2(e, K, xcc, x):
    if xcc >= 0:
        e("    s_getreg_b32 s54, hwreg(HW_REG_XCC_ID)")
        e("    s_and_b32 s54, s54, 15")
        e(f"    s_cmp_lg_u32 s54, {xcc}")
        e("    s_cbranch_scc1 L_end")
    e("    s_mov_b64 exec, 1")
    e("    v_mov_b32 v6, 0")
    e("    s_sleep 127")
    e("    buffer_load_dword v5, v6, s[60:63], 0 offen sc0 sc1")
    e("    s_waitcnt vmcnt(0) lgkmcnt(0)")
    e("    v_readfirstlane_b32 s57, v5")
    e("    s_nop 3")
    e("    s_not_b32 s57, s57")
    e(f"    s_sub_u32 s56, s{40+2*x}, s57")
    e(f"    s_mul_i32 s56, s56, {K}")
    e("    s_add_u32 s56, s56, 1500")
    e("    s_min_u32 s56, s56, 20000")
    e("L_spin:")
    e("    s_sleep 4")
    e("    s_memrealtime s[58:59]")
    e("    s_waitcnt lgkmcnt(0)")
    e("    s_sub_u32 s55, s58, s57")
    e("    s_cmp_lt_u32 s55, s56")
    e("    s_cbranch_scc1 L_spin")


def gamp_end(e, K, sel):
    if sel:
        e("    s_getreg_b32 s54, hwreg(HW_REG_XCC_ID)")
        e("    s_and_b32 s54, s54, 4")
        e(f"    s_cbranch_scc{1 if sel == 1 else 0} L_end")
    e("    s_mov_b64 exec, 1")
    e("    v_mov_b32 v6, 0")
    e("    s_sleep 127")
    e("    buffer_load_dword v5, v6, s[60:63], 0 offen sc0 sc1")
    e("    s_waitcnt vmcnt(0) lgkmcnt(0)")
    e("    v_readfirstlane_b32 s57, v5")
    e("    s_nop 3")
    e("    s_not_b32 s57, s57")
    e("    s_sub_u32 s56, s52, s57")
    e(f"    s_mul_i32 s56, s56, {K+1}")
    e("    s_min_u32 s56, s56, 20000")
    e("L_spin:")
    e("    s_sleep 4")
    e("    s_memrealtime s[58:59]")
    e("    s_waitcnt lgkmcnt(0)")
    e("    s_sub_u32 s55, s58, s57")
    e("    s_cmp_lt_u32 s55, s56")
    e("    s_cbranch_scc1 L_spin")


def gen_v4_spw2(waves=8, lds=0, hint="", idxhint="", neg=True, stamps=False, dbl=False, hops=0, hopsz=64, amp=(0,5,4), skipmask=0, exact=False):
    o = []
    e = o.append
    nwg = B // (2 * waves)
    spwg = 2 * waves
    lite = stamps == 5
    if lite:
        stamps = 1
    def stamp(k):
        if stamps and (not lite or k in (0, 6)):
            e(f"    s_memrealtime s[{40+2*k}:{41+2*k}]")
    stamp(0)
    if stamps == 1:
        e("    s_load_dwordx2 s[60:61], s[0:1], 32")
    if stamps in (2, 4):
        e("    s_load_dwordx2 s[60:61], s[0:1], 24")
    e("    s_load_dwordx4 s[4:7], s[0:1], 0")
    e("    s_load_dwordx2 s[8:9], s[0:1], 16")
    e(f"    s_cmp_ge_u32 s2, {nwg}")
    e("    s_cbranch_scc1 L_end")
    if skipmask:
        e(f"    s_and_b32 s3, s2, {skipmask}")
        e("    s_cbranch_scc1 L_end")
    for h in range(hops):
        e(f"    s_branch L_hop{h}")
        e(f"    .p2align {hopsz.bit_length()-1}")
        e(f"L_hop{h}:")
    if hopsz != 4096 and stamps == 3 and amp[0] == 0 and amp[1] == 7:
        e("    s_memrealtime s[54:55]")
    e("    v_bfe_u32 v1, v0, 3, 1")
    e("    v_lshrrev_b32 v2, 6, v0")
    e("    v_lshl_add_u32 v1, v2, 1, v1            ; sample_local")
    e("    v_bfe_u32 v3, v0, 5, 1")
    e("    v_lshl_add_u32 v1, v1, 1, v3")
    e("    v_mul_u32_u24 v1, 52, v1")
    e(f"    s_mul_i32 s3, s2, {spwg*104}")
    e(f"    s_mov_b32 s14, {B*F*4}")
    e("    s_mov_b32 s15, 0x00020000")
    e(f"    s_mov_b32 s18, {V*256}")
    e("    s_mov_b32 s19, 0x00020000")
    e("    s_waitcnt lgkmcnt(0)")
    stamp(1)
    e("    s_mov_b32 s12, s4")
    e("    s_mov_b32 s13, s5")
    e(f"    buffer_load_dwordx4 v[8:11], v1, s[12:15], s3 offen {idxhint}")
    e(f"    buffer_load_dwordx4 v[12:15], v1, s[12:15], s3 offen offset:16 {idxhint}")
    e(f"    buffer_load_dwordx4 v[16:19], v1, s[12:15], s3 offen offset:32 {idxhint}")
    e(f"    buffer_load_dword v20, v1, s[12:15], s3 offen offset:48 {idxhint}")
    e("    s_mov_b32 s16, s6")
    e("    s_mov_b32 s17, s7")
    e("    s_mov_b32 s20, s8")
    e("    s_mov_b32 s21, s9")
    e(f"    s_mov_b32 s22, {B*2}")
    e("    s_mov_b32 s23, 0x00020000")
    e("    v_and_b32 v4, 7, v0")
    e("    v_lshlrev_b32 v4, 4, v4")
    e("    v_bfe_u32 v5, v0, 4, 1")
    e("    v_lshl_add_u32 v4, v5, 7, v4")
    e("    v_bfe_u32 v6, v0, 3, 1")
    e("    v_cmp_eq_u32 vcc, v5, v6")
    e("    v_and_b32 v7, 1, v0")
    e("    v_lshlrev_b32 v7, 4, v7")
    e("    v_mov_b32 v21, 0x3f80")
    e("    v_lshlrev_b32 v7, v7, v21               ; 0x3f80 << (16*bit0)")
    e("    v_cndmask_b32 v7, 0, v7, vcc")
    e("    v_bfe_u32 v6, v0, 1, 2")
    for r in range(4):
        e(f"    v_cmp_eq_u32 vcc, {r}, v6")
        e("    s_nop 1")
        e(f"    v_cndmask_b32 v{24+r}, 0, v7, vcc")
    for r in range(28, 36):
        e(f"    v_mov_b32 v{r}, 0")
    e("    v_lshl_add_u32 v2, v2, 1, v3")
    e("    v_lshlrev_b32 v2, 1, v2")
    e(f"    s_mul_i32 s24, s2, {spwg*2}")
    if exact:
        e("    s_mov_b32 s26, 0xffff0000")
    else:
        for r in range(4):
            m = (1 << r) | (1 << (20 + r)) | (1 << (40 + r)) | (1 << (60 + r))
            e(f"    s_mov_b32 s{26+2*r}, 0x{m & 0xffffffff:08x}")
            e(f"    s_mov_b32 s{27+2*r}, 0x{m >> 32:08x}")
    e(f"    s_mov_b32 s25, {V}")
    DATA = 36
    for i in range(13):
        if i == 0:
            e("    s_waitcnt vmcnt(3)")
            stamp(2)
        elif i == 4:
            e("    s_waitcnt vmcnt(6)")
        elif i == 8:
            e("    s_waitcnt vmcnt(9)")
        elif i == 12:
            e("    s_waitcnt vmcnt(12)")
        vi = 8 + i
        if neg:
            e(f"    v_add_u32 v21, s25, v{vi}")
            e(f"    v_min_u32 v{vi}, v{vi}, v21")
        if dbl:
            e(f"    v_add_u32 v21, 50000, v{vi}")
            e(f"    v_subrev_u32 v22, s25, v21")
            e(f"    v_min_u32 v21, v22, v21")
            e(f"    v_lshl_add_u32 v{100+i}, v21, 8, v4")
        e(f"    v_lshl_add_u32 v{vi}, v{vi}, 8, v4")
        d = DATA + 4 * i
        e(f"    buffer_load_dwordx4 v[{d}:{d+3}], v{vi}, s[16:19], 0 offen {hint}")
    if dbl:
        for i in range(13):
            e(f"    buffer_load_dwordx4 v[{120+4*i}:{123+4*i}], v{100+i}, s[16:19], 0 offen {hint}")
        e("    s_waitcnt vmcnt(0)")
    extra = 0
    if stamps == 4:
        gamp_start(e)
        extra = 1
    for i in range(13):
        d = DATA + 4 * i
        if i == 0:
            stamp(3)
        e(f"    s_waitcnt vmcnt({12-i+extra})")
        if i == 0:
            stamp(4)
        if i == 12:
            stamp(5)
        if not exact:
            e(f"    v_mfma_f32_16x16x32_bf16 v[32:35], v[{d}:{d+3}], v[{d}:{d+3}], v[32:35]")
            e(f"    v_mfma_f32_16x16x32_bf16 v[28:31], v[{d}:{d+3}], v[24:27], v[28:31]")
        else:
            e(f"    v_mfma_f32_16x16x32_bf16 v[28:31], v[{d}:{d+3}], v[24:27], v[28:31]")
            for k in range(4):
                e(f"    v_lshlrev_b32 v{8+2*k}, 16, v{d+k}")
                e(f"    v_and_b32 v{9+2*k}, s26, v{d+k}")
            for k in range(4):
                e(f"    v_pk_mul_f32 v[{8+2*k}:{9+2*k}], v[{8+2*k}:{9+2*k}], v[{8+2*k}:{9+2*k}]")
            for k in range(4):
                e(f"    v_cvt_pk_bf16_f32 v{d+k}, v{8+2*k}, v{9+2*k}")
            if i < 12:
                e("    s_nop 1")
            else:
                e("    v_cvt_pk_bf16_f32 v16, v28, v29")
                e("    v_cvt_pk_bf16_f32 v17, v30, v31")
            e(f"    v_mfma_f32_16x16x32_bf16 v[32:35], v[{d}:{d+3}], v[24:27], v[32:35]")
    if not exact:
        e("    s_nop 6")
        e("    v_cndmask_b32 v5, 0, v32, s[26:27]")
        e("    v_cndmask_b32 v5, v5, v33, s[28:29]")
        e("    v_cndmask_b32 v5, v5, v34, s[30:31]")
        e("    v_cndmask_b32 v5, v5, v35, s[32:33]")
        e("    v_fma_f32 v5, v28, v28, -v5")
        e("    v_fmac_f32 v5, v29, v29")
        e("    v_fmac_f32 v5, v30, v30")
        e("    v_fmac_f32 v5, v31, v31")
    else:
        e("    v_lshlrev_b32 v8, 16, v16")
        e("    v_and_b32 v9, s26, v16")
        e("    v_lshlrev_b32 v10, 16, v17")
        e("    v_and_b32 v11, s26, v17")
        e("    v_pk_mul_f32 v[8:9], v[8:9], v[8:9]")
        e("    v_pk_mul_f32 v[10:11], v[10:11], v[10:11]")
        e("    v_cvt_pk_bf16_f32 v16, v8, v9")
        e("    v_cvt_pk_bf16_f32 v17, v10, v11")
        e("    v_cvt_pk_bf16_f32 v18, v32, v33")
        e("    v_cvt_pk_bf16_f32 v19, v34, v35")
        e("    v_lshlrev_b32 v8, 16, v16")
        e("    v_and_b32 v9, s26, v16")
        e("    v_lshlrev_b32 v10, 16, v17")
        e("    v_and_b32 v11, s26, v17")
        e("    v_lshlrev_b32 v12, 16, v18")
        e("    v_and_b32 v13, s26, v18")
        e("    v_lshlrev_b32 v14, 16, v19")
        e("    v_and_b32 v15, s26, v19")
        e("    v_pk_add_f32 v[8:9], v[8:9], v[12:13] neg_lo:[0,1] neg_hi:[0,1]")
        e("    v_pk_add_f32 v[10:11], v[10:11], v[14:15] neg_lo:[0,1] neg_hi:[0,1]")
        e("    v_cvt_pk_bf16_f32 v16, v8, v9")
        e("    v_cvt_pk_bf16_f32 v17, v10, v11")
        e("    v_lshlrev_b32 v8, 16, v16")
        e("    v_and_b32 v9, s26, v16")
        e("    v_lshlrev_b32 v10, 16, v17")
        e("    v_and_b32 v11, s26, v17")
        e("    v_pk_add_f32 v[8:9], v[8:9], v[10:11]")
        e("    v_add_f32 v5, v8, v9")
    e("    s_nop 1")
    e("    v_add_f32_dpp v5, v5, v5 row_shr:1 row_mask:0xf bank_mask:0xf bound_ctrl:0")
    e("    s_nop 1")
    e("    v_add_f32_dpp v5, v5, v5 row_shr:2 row_mask:0xf bank_mask:0xf bound_ctrl:0")
    e("    s_nop 1")
    e("    v_add_f32_dpp v5, v5, v5 row_shr:4 row_mask:0xf bank_mask:0xf bound_ctrl:0")
    e("    s_nop 1")
    e("    v_add_f32_dpp v5, v5, v5 row_shr:8 row_mask:0xf bank_mask:0xf bound_ctrl:0")
    e("    s_nop 1")
    e("    v_add_f32_dpp v5, v5, v5 row_bcast:15 row_mask:0xa bank_mask:0xf")
    e("    s_mov_b32 exec_lo, 0x80000000")
    e("    s_mov_b32 exec_hi, 0x80000000")
    e("    v_mul_f32 v5, 0.5, v5")
    e("    v_cvt_pk_bf16_f32 v5, v5, v5")
    e("    buffer_store_short v5, v2, s[20:23], s24 offen")
    if stamps == 4:
        e("    s_mov_b64 exec, -1")
        e("    v_readfirstlane_b32 s54, v0")
        e("    s_barrier")
        e("    s_cmp_lg_u32 s54, 0")
        e("    s_cbranch_scc1 L_end")
        stamp(6)
        if len(amp) == 4:
            gamp_end2(e, amp[2], amp[0], amp[1])
        else:
            gamp_end(e, amp[2], amp[0])
    if stamps == 3:
        stamp(6)
        a_, b_, K = amp[:3]
        if len(amp) > 3:
            e(f"    s_cmp_lg_u32 s2, {amp[3]}")
            e("    s_cbranch_scc1 L_end")
            e("    s_mov_b64 exec, -1")
            e("    v_readfirstlane_b32 s60, v0")
            e("    s_nop 3")
            e(f"    s_cmp_lg_u32 s60, {64*amp[4]}")
            e("    s_cbranch_scc1 L_end")
        e("    s_waitcnt lgkmcnt(0)")
        e(f"    s_sub_u32 s56, s{40+2*b_}, s{40+2*a_}")
        e(f"    s_mul_i32 s56, s56, {K}")
        e("    s_min_u32 s56, s56, 20000")
        e("L_spin:")
        e("    s_sleep 4")
        e("    s_memrealtime s[58:59]")
        e("    s_waitcnt lgkmcnt(0)")
        e("    s_sub_u32 s57, s58, s52")
        e("    s_cmp_lt_u32 s57, s56")
        e("    s_cbranch_scc1 L_spin")
    if stamps == 2:
        stamp(6)
        e("    s_mov_b32 s62, 256")
        e("    s_mov_b32 s63, 0x00020000")
        e("    s_mov_b64 exec, -1")
        e("    v_readfirstlane_b32 s56, v0")
        e("    v_and_b32 v1, 63, v0")
        e("    v_lshlrev_b32 v1, 2, v1")
        e("    v_mov_b32 v8, 0")
        e("    s_lshr_b32 s56, s56, 6")
        e("    s_and_b32 s56, s56, 7")
        e("    s_cmp_eq_u32 s56, 0")
        e("    s_cbranch_scc1 L_dodbg")
        e("    s_cmp_eq_u32 s56, 7")
        e("    s_cbranch_scc0 L_end")
        e("L_dodbg:")
        e("    s_waitcnt lgkmcnt(0)")
        for k in range(7):
            e(f"    v_writelane_b32 v8, s{40+2*k}, {k}")
            e(f"    s_not_b32 s57, s{40+2*k}")
            e(f"    v_writelane_b32 v8, s57, {8+k}")
        e("    s_mov_b64 exec, 0x7f7f")
        e("    buffer_atomic_umax v8, v1, s[60:63], 0 offen")
    if stamps == 1:
        stamp(6)
        e("    s_getreg_b32 s54, hwreg(HW_REG_XCC_ID)")
        e("    s_getreg_b32 s55, hwreg(HW_REG_HW_ID)")
        e("    s_mov_b32 s62, 0x10000000")
        e("    s_mov_b32 s63, 0x00020000")
        e("    s_waitcnt lgkmcnt(0)")
        e("    s_mov_b64 exec, 1")
        for k in range(7):
            e(f"    v_mov_b32 v{8+k}, s{40+2*k}")
        e("    v_mov_b32 v15, s54")
        e("    v_mov_b32 v16, s55")
        e("    v_mov_b32 v17, s41")
        e("    v_mov_b32 v18, 0")
        e("    v_mov_b32 v19, 0")
        e("    v_lshrrev_b32 v1, 6, v0")
        e(f"    s_mul_i32 s3, s2, {waves*64}")
        e("    v_lshlrev_b32 v1, 6, v1")
        e("    buffer_store_dwordx4 v[8:11], v1, s[60:63], s3 offen")
        e("    buffer_store_dwordx4 v[12:15], v1, s[60:63], s3 offen offset:16")
        e("    buffer_store_dwordx4 v[16:19], v1, s[60:63], s3 offen offset:32")
    e("L_end:")
    e("    s_endpgm")
    vg = DATA + 52 if not dbl else 172
    return (HEADER.format(grid=nwg, block=64 * waves, lds=lds, name=NAME) + "\n".join(o)
            + FOOTER.format(name=NAME, vgpr=vg, sgpr=(64 if stamps else 40), accum=(vg + 3) // 4 * 4))


def stamp_dump(e, waves):
    e("    s_getreg_b32 s54, hwreg(HW_REG_XCC_ID)")
    e("    s_getreg_b32 s55, hwreg(HW_REG_HW_ID)")
    e("    s_mov_b32 s62, 0x10000000")
    e("    s_mov_b32 s63, 0x00020000")
    e("    s_waitcnt lgkmcnt(0)")
    e("    s_mov_b64 exec, 1")
    for k in range(7):
        e(f"    v_mov_b32 v{8+k}, s{40+2*k}")
    e("    v_mov_b32 v15, s54")
    e("    v_mov_b32 v16, s55")
    e("    v_mov_b32 v17, s41")
    e("    v_mov_b32 v18, 0")
    e("    v_mov_b32 v19, 0")
    e("    v_lshrrev_b32 v1, 6, v0")
    e(f"    s_mul_i32 s3, s2, {waves*64}")
    e("    v_lshlrev_b32 v1, 6, v1")
    e("    buffer_store_dwordx4 v[8:11], v1, s[60:63], s3 offen")
    e("    buffer_store_dwordx4 v[12:15], v1, s[60:63], s3 offen offset:16")
    e("    buffer_store_dwordx4 v[16:19], v1, s[60:63], s3 offen offset:32")


def gen_s1(waves=16, lds=0, hint="", stamps=0, neg=True):
    o = []
    e = o.append
    nwg = B // waves
    def stamp(k):
        if stamps:
            e(f"    s_memrealtime s[{40+2*k}:{41+2*k}]")
    stamp(0)
    if stamps == 1:
        e("    s_load_dwordx2 s[60:61], s[0:1], 32")
    e("    s_load_dwordx4 s[4:7], s[0:1], 0")
    e("    s_load_dwordx2 s[8:9], s[0:1], 16")
    e("    v_readfirstlane_b32 s3, v0")
    e(f"    s_cmp_ge_u32 s2, {nwg}")
    e("    s_cbranch_scc1 L_end")
    e("    s_lshr_b32 s3, s3, 6")
    e(f"    s_mul_i32 s10, s2, {waves}")
    e("    s_add_u32 s10, s10, s3                  ; sample")
    e("    s_mul_i32 s11, s10, 104")
    e(f"    s_mov_b32 s18, {V*256}")
    e("    s_mov_b32 s19, 0x00020000")
    e("    v_and_b32 v1, 63, v0")
    e("    v_lshlrev_b32 v4, 2, v1                 ; lane*4")
    e("    s_waitcnt lgkmcnt(0)")
    stamp(1)
    e("    s_add_u32 s4, s4, s11")
    e("    s_addc_u32 s5, s5, 0")
    e("    s_load_dwordx16 s[64:79], s[4:5], 0")
    e("    s_load_dwordx8 s[80:87], s[4:5], 64")
    e("    s_load_dwordx2 s[88:89], s[4:5], 96")
    e("    s_mov_b32 s16, s6")
    e("    s_mov_b32 s17, s7")
    e("    s_mov_b32 s20, s8")
    e("    s_mov_b32 s21, s9")
    e(f"    s_mov_b32 s22, {B*2}")
    e("    s_mov_b32 s23, 0x00020000")
    e("    v_and_b32 v5, 15, v1")
    e("    v_lshrrev_b32 v6, 4, v1")
    e("    v_lshrrev_b32 v7, 1, v5")
    e("    v_cmp_eq_u32 vcc, v7, v6")
    e("    v_and_b32 v7, 1, v1")
    e("    v_lshlrev_b32 v7, 4, v7")
    e("    v_mov_b32 v21, 0x3f80")
    e("    v_lshlrev_b32 v7, v7, v21")
    e("    v_cndmask_b32 v24, 0, v7, vcc")
    e("    v_cndmask_b32 v25, 0, v7, vcc")
    e("    v_cndmask_b32 v26, 0, v7, vcc")
    e("    v_cndmask_b32 v27, 0, v7, vcc")
    for r in range(28, 36):
        e(f"    v_mov_b32 v{r}, 0")
    DATA = 36
    e(f"    v_mov_b32 v{DATA+26}, 0")
    e(f"    v_mov_b32 v{DATA+27}, 0")
    for r in range(4):
        m = (1 << r) | (1 << (20 + r)) | (1 << (40 + r)) | (1 << (60 + r))
        e(f"    s_mov_b32 s{26+2*r}, 0x{m & 0xffffffff:08x}")
        e(f"    s_mov_b32 s{27+2*r}, 0x{m >> 32:08x}")
    e("    s_lshl_b32 s24, s10, 1")
    e("    v_mov_b32 v2, 0")
    e("    s_waitcnt lgkmcnt(0)")
    stamp(2)
    for f in range(26):
        s = 64 + f
        e(f"    s_lshl_b32 s{s}, s{s}, 8")
        if neg:
            e(f"    s_add_u32 s25, s{s}, {V*256}")
            e(f"    s_min_u32 s{s}, s{s}, s25")
        e(f"    buffer_load_dword v{DATA+f}, v4, s[16:19], s{s} offen {hint}")
    stamp(3)
    for i in range(7):
        d = DATA + 4 * i
        e(f"    s_waitcnt vmcnt({max(0, 26-4*(i+1))})")
        if i == 0:
            stamp(4)
        if i == 6:
            stamp(5)
        e(f"    v_mfma_f32_16x16x32_bf16 v[32:35], v[{d}:{d+3}], v[{d}:{d+3}], v[32:35]")
        e(f"    v_mfma_f32_16x16x32_bf16 v[28:31], v[{d}:{d+3}], v[24:27], v[28:31]")
    e("    s_nop 6")
    e("    v_cndmask_b32 v5, 0, v32, s[26:27]")
    e("    v_cndmask_b32 v5, v5, v33, s[28:29]")
    e("    v_cndmask_b32 v5, v5, v34, s[30:31]")
    e("    v_cndmask_b32 v5, v5, v35, s[32:33]")
    e("    v_fma_f32 v5, v28, v28, -v5")
    e("    v_fmac_f32 v5, v29, v29")
    e("    v_fmac_f32 v5, v30, v30")
    e("    v_fmac_f32 v5, v31, v31")
    for sh in (1, 2, 4, 8):
        e("    s_nop 1")
        e(f"    v_add_f32_dpp v5, v5, v5 row_shr:{sh} row_mask:0xf bank_mask:0xf bound_ctrl:0")
    e("    s_nop 1")
    e("    v_add_f32_dpp v5, v5, v5 row_bcast:15 row_mask:0xa bank_mask:0xf")
    e("    s_nop 1")
    e("    v_add_f32_dpp v5, v5, v5 row_bcast:31 row_mask:0xc bank_mask:0xf")
    e("    s_mov_b32 exec_lo, 0")
    e("    s_mov_b32 exec_hi, 0x80000000")
    e("    v_mul_f32 v5, 0.5, v5")
    e("    v_cvt_pk_bf16_f32 v5, v5, v5")
    e("    buffer_store_short v5, v2, s[20:23], s24 offen")
    if stamps == 1:
        stamp(6)
        stamp_dump(e, waves)
    e("L_end:")
    e("    s_endpgm")
    vg = DATA + 28
    return (HEADER.format(grid=nwg, block=64 * waves, lds=lds, name=NAME) + "\n".join(o)
            + FOOTER.format(name=NAME, vgpr=vg, sgpr=96, accum=(vg + 3) // 4 * 4))


if __name__ == "__main__":
    ap = argparse.ArgumentParser()
    ap.add_argument("--kind", default="v4_spw2")
    ap.add_argument("--waves", type=int, default=8)
    ap.add_argument("--lds", type=int, default=0)
    ap.add_argument("--hint", default="")
    ap.add_argument("--idxhint", default="")
    ap.add_argument("--stamps", type=int, default=0)
    ap.add_argument("--dbl", action="store_true")
    ap.add_argument("--hops", type=int, default=0)
    ap.add_argument("--hopsz", type=int, default=64)
    ap.add_argument("--amp", default="0,5,4")
    ap.add_argument("--skipmask", type=int, default=0)
    ap.add_argument("--exact", action="store_true")
    ap.add_argument("-o", default="/dev/stdout")
    a = ap.parse_args()
    if a.kind == "v4_spw2":
        s = gen_v4_spw2(a.waves, a.lds, a.hint, a.idxhint, stamps=a.stamps, dbl=a.dbl, hops=a.hops, hopsz=a.hopsz, amp=tuple(int(x) for x in a.amp.split(",")), skipmask=a.skipmask, exact=a.exact)
    elif a.kind == "s1":
        s = gen_s1(a.waves, a.lds, a.hint, a.stamps)
    open(a.o, "w").write(s)
```

```python
import sys, argparse
sys.path.insert(0, 'gen')
from gen import HEADER, FOOTER, NAME, B, F, D, V, stamp_dump


def gen(waves=8, G=1, stamps=0, amp=None, hint="", prio=0, warm=False, order="seq", depth=99, cheapload=0, cheaptail=0, defer=0, smul=0, remap=0, sthint="", waitst=0):
    o = []
    e = o.append
    spw = 2 * G
    spwg = spw * waves
    nwg = B // spwg

    lite = stamps == 5
    if lite:
        stamps = 1

    def stamp(k):
        if stamps and (not lite or k in (0, 6)):
            e(f"    s_memrealtime s[{40+2*k}:{41+2*k}]")
    SEL = 4
    T = 8
    ACC = 16
    IDX = ACC + 8 * G
    IDX = (IDX + 3) // 4 * 4
    DATA = IDX + 16 * G
    vg = DATA + 52 * G
    stamp(0)
    if stamps == 1:
        e("    s_load_dwordx2 s[60:61], s[0:1], 32")
    e("    s_load_dwordx2 s[12:13], s[0:1], 0")
    e("    s_load_dwordx2 s[16:17], s[0:1], 8")
    e("    s_load_dwordx2 s[20:21], s[0:1], 16")
    e(f"    s_cmp_ge_u32 s2, {nwg}")
    e("    s_cbranch_scc1 L_end")
    if remap >= 100:
        nb = remap - 100
        lg = nwg.bit_length() - 1
        e(f"    s_lshr_b32 s4, s2, {lg - nb}")
        e(f"    s_lshl_b32 s2, s2, {nb}")
        e(f"    s_and_b32 s2, s2, {nwg - 1}")
        e("    s_or_b32 s2, s2, s4")
    elif remap:
        nb = remap if remap > 0 else (64 // spwg).bit_length() - 1
        e("    s_and_b32 s4, s2, 7")
        e(f"    s_bfe_u32 s5, s2, {(nb << 16) | 3:#x}")
        e(f"    s_andn2_b32 s2, s2, {(8 << nb) - 1}")
        e(f"    s_lshl_b32 s4, s4, {nb}")
        e("    s_or_b32 s2, s2, s5")
        e("    s_or_b32 s2, s2, s4")
    e("    v_bfe_u32 v1, v0, 3, 1")
    e("    v_lshrrev_b32 v2, 6, v0                 ; wave")
    e("    v_bfe_u32 v3, v0, 5, 1")
    e("    v_lshl_add_u32 v1, v1, 1, v3")
    e(f"    v_lshl_add_u32 v1, v2, {(2*spw).bit_length()-1}, v1")
    e("    v_mul_u32_u24 v1, 52, v1")
    e(f"    s_mul_i32 s3, s2, {spwg*104}")
    e(f"    s_mov_b32 s14, {B*F*4}")
    e("    s_mov_b32 s15, 0x00020000")
    e(f"    s_mov_b32 s18, {V*256}")
    e("    s_mov_b32 s19, 0x00020000")
    e("    s_waitcnt lgkmcnt(0)")
    stamp(1)
    for g in range(G):
        b = IDX + 16 * g
        off = 208 * g
        e(f"    buffer_load_dwordx4 v[{b}:{b+3}], v1, s[12:15], s3 offen offset:{off}")
        e(f"    buffer_load_dwordx4 v[{b+4}:{b+7}], v1, s[12:15], s3 offen offset:{off+16}")
        e(f"    buffer_load_dwordx4 v[{b+8}:{b+11}], v1, s[12:15], s3 offen offset:{off+32}")
        e(f"    buffer_load_dword v{b+12}, v1, s[12:15], s3 offen offset:{off+48}")
    e(f"    s_mov_b32 s22, {B*2}")
    e("    s_mov_b32 s23, 0x00020000")
    e(f"    v_lshl_add_u32 v2, v2, {spw.bit_length()-1}, v3")
    e("    v_lshlrev_b32 v2, 1, v2")
    e("    v_and_b32 v3, 7, v0")
    e("    v_lshlrev_b32 v3, 4, v3")
    e("    v_bfe_u32 v8, v0, 4, 1")
    e("    v_lshl_add_u32 v3, v8, 7, v3")
    e("    v_bfe_u32 v9, v0, 3, 1")
    e("    v_cmp_eq_u32 vcc, v8, v9")
    e("    v_and_b32 v10, 1, v0")
    e("    v_lshlrev_b32 v10, 4, v10")
    e("    v_mov_b32 v11, 0x3f80")
    e("    v_lshlrev_b32 v10, v10, v11")
    e("    v_cndmask_b32 v10, 0, v10, vcc")
    e("    v_bfe_u32 v9, v0, 1, 2")
    for r in range(4):
        e(f"    v_cmp_eq_u32 vcc, {r}, v9")
        e("    s_nop 1")
        e(f"    v_cndmask_b32 v{SEL+r}, 0, v10, vcc")
    e(f"    s_mul_i32 s24, s2, {spwg*2}")
    e("    s_mov_b32 s26, 0xffff0000")
    e(f"    s_mov_b32 s25, {V}")
    nidx = 4 * G
    n = 13 * G
    q = [("idx", k) for k in range(nidx)]

    def wait_for(tag):
        pos = q.index(tag)
        cnt = len(q) - 1 - pos
        e(f"    s_waitcnt vmcnt({cnt})")

    waited_idx = set()

    def issue(j):
        g, i = divmod(j, 13)
        k = 4 * g + i // 4
        if k not in waited_idx:
            wait_for(("idx", k))
            waited_idx.add(k)
            if j == 0:
                stamp(2)
        vi = IDX + 16 * g + i
        e(f"    v_add_u32 v1, s25, v{vi}")
        e(f"    v_min_u32 v{vi}, v{vi}, v1")
        e(f"    v_lshl_add_u32 v{vi}, v{vi}, 8, v3")
        d = DATA + 52 * g + 4 * i
        e(f"    buffer_load_dwordx4 v[{d}:{d+3}], v{vi}, s[16:19], 0 offen {hint}")
        q.append(("ld", j))
    nxt = 0
    while nxt < min(depth, n):
        issue(nxt)
        nxt += 1
    stamp(3)
    for g in range(G):
        S = ACC + 8 * g
        Q = S + 4
        for i in range(13):
            d = DATA + 52 * g + 4 * i
            wait_for(("ld", 13 * g + i))
            for k in range(nidx):
                waited_idx.add(k)
            if g == 0 and i == 0:
                stamp(4)
            if g == G - 1 and i == 12:
                stamp(5)
            if nxt < n:
                issue(nxt)
                nxt += 1
            c = "0" if i == 0 else f"v[{S}:{S+3}]"
            e(f"    v_mfma_f32_16x16x32_bf16 v[{S}:{S+3}], v[{d}:{d+3}], v[{SEL}:{SEL+3}], {c}")
            if defer and i > 0:
                c = "0" if i == 1 else f"v[{Q}:{Q+3}]"
                e(f"    v_mfma_f32_16x16x32_bf16 v[{Q}:{Q+3}], v[{d-4}:{d-1}], v[{SEL}:{SEL+3}], {c}")
            if not (cheapload == 1 or (cheapload == 2 and i < 12)):
                for k in range(4):
                    e(f"    v_lshlrev_b32 v{T+2*k}, 16, v{d+k}")
                    e(f"    v_and_b32 v{T+1+2*k}, s26, v{d+k}")
                for k in range(4):
                    if smul:
                        e(f"    v_mul_f32 v{T+2*k}, v{T+2*k}, v{T+2*k}")
                        e(f"    v_mul_f32 v{T+1+2*k}, v{T+1+2*k}, v{T+1+2*k}")
                    else:
                        e(f"    v_pk_mul_f32 v[{T+2*k}:{T+1+2*k}], v[{T+2*k}:{T+1+2*k}], v[{T+2*k}:{T+1+2*k}]")
                for k in range(4):
                    e(f"    v_cvt_pk_bf16_f32 v{d+k}, v{T+2*k}, v{T+1+2*k}")
            elif i == 12:
                e("    s_nop 7")
            X = IDX + 16 * g
            if i < 12:
                if defer:
                    continue
                e("    s_nop 1")
            else:
                e(f"    v_cvt_pk_bf16_f32 v{X}, v{S}, v{S+1}")
                e(f"    v_cvt_pk_bf16_f32 v{X+1}, v{S+2}, v{S+3}")
            c = "0" if i == 0 else f"v[{Q}:{Q+3}]"
            e(f"    v_mfma_f32_16x16x32_bf16 v[{Q}:{Q+3}], v[{d}:{d+3}], v[{SEL}:{SEL+3}], {c}")
        if not cheaptail:
            e(f"    v_lshlrev_b32 v8, 16, v{X}")
            e(f"    v_and_b32 v9, s26, v{X}")
            e(f"    v_lshlrev_b32 v10, 16, v{X+1}")
            e(f"    v_and_b32 v11, s26, v{X+1}")
            e("    v_pk_mul_f32 v[8:9], v[8:9], v[8:9]")
            e("    v_pk_mul_f32 v[10:11], v[10:11], v[10:11]")
            e(f"    v_cvt_pk_bf16_f32 v{X}, v8, v9")
            e(f"    v_cvt_pk_bf16_f32 v{X+1}, v10, v11")
            e(f"    v_cvt_pk_bf16_f32 v{X+2}, v{Q}, v{Q+1}")
            e(f"    v_cvt_pk_bf16_f32 v{X+3}, v{Q+2}, v{Q+3}")
            e(f"    v_lshlrev_b32 v8, 16, v{X}")
            e(f"    v_and_b32 v9, s26, v{X}")
            e(f"    v_lshlrev_b32 v10, 16, v{X+1}")
            e(f"    v_and_b32 v11, s26, v{X+1}")
            e(f"    v_lshlrev_b32 v12, 16, v{X+2}")
            e(f"    v_and_b32 v13, s26, v{X+2}")
            e(f"    v_lshlrev_b32 v14, 16, v{X+3}")
            e(f"    v_and_b32 v15, s26, v{X+3}")
            e("    v_pk_add_f32 v[8:9], v[8:9], v[12:13] neg_lo:[0,1] neg_hi:[0,1]")
            e("    v_pk_add_f32 v[10:11], v[10:11], v[14:15] neg_lo:[0,1] neg_hi:[0,1]")
            e(f"    v_cvt_pk_bf16_f32 v{X}, v8, v9")
            e(f"    v_cvt_pk_bf16_f32 v{X+1}, v10, v11")
            e(f"    v_lshlrev_b32 v8, 16, v{X}")
            e(f"    v_and_b32 v9, s26, v{X}")
            e(f"    v_lshlrev_b32 v10, 16, v{X+1}")
            e(f"    v_and_b32 v11, s26, v{X+1}")
            e("    v_pk_add_f32 v[8:9], v[8:9], v[10:11]")
        else:
            e("    s_nop 7")
            e(f"    v_add_f32 v8, v{Q}, v{Q+1}")
            e(f"    v_add_f32 v9, v{Q+2}, v{Q+3}")
        R = X + 4
        e(f"    v_add_f32 v{R}, v8, v9")
        for sh in (1, 2, 4, 8):
            e("    s_nop 1")
            e(f"    v_add_f32_dpp v{R}, v{R}, v{R} row_shr:{sh} row_mask:0xf bank_mask:0xf bound_ctrl:0")
        e("    s_nop 1")
        e(f"    v_add_f32_dpp v{R}, v{R}, v{R} row_bcast:15 row_mask:0xa bank_mask:0xf")
        e("    s_mov_b32 exec_lo, 0x80000000")
        e("    s_mov_b32 exec_hi, 0x80000000")
        e(f"    v_mul_f32 v{R}, 0.5, v{R}")
        e(f"    v_cvt_pk_bf16_f32 v{R}, v{R}, v{R}")
        e(f"    buffer_store_short v{R}, v2, s[20:23], s24 offen offset:{4*g} {sthint}")
        q.append(("st", g))
        if g < G - 1:
            e("    s_mov_b64 exec, -1")
    if stamps == 1:
        if waitst:
            e("    s_memrealtime s[50:51]")
            e("    s_waitcnt vmcnt(0)")
        stamp(6)
        stamp_dump(e, waves)
    if stamps == 3:
        stamp(6)
        a_, b_, K = amp[:3]
        e("    s_waitcnt lgkmcnt(0)")
        e(f"    s_sub_u32 s56, s{40+2*b_}, s{40+2*a_}")
        e(f"    s_mul_i32 s56, s56, {K}")
        e("    s_min_u32 s56, s56, 20000")
        e("L_spin:")
        e("    s_sleep 4")
        e("    s_memrealtime s[58:59]")
        e("    s_waitcnt lgkmcnt(0)")
        e("    s_sub_u32 s57, s58, s52")
        e("    s_cmp_lt_u32 s57, s56")
        e("    s_cbranch_scc1 L_spin")
    e("L_end:")
    e("    s_endpgm")
    vg = max(vg, 20)
    return (HEADER.format(grid=nwg, block=64 * waves, lds=0, name=NAME) + "\n".join(o)
            + FOOTER.format(name=NAME, vgpr=vg, sgpr=(64 if stamps else 32), accum=(vg + 3) // 4 * 4))


if __name__ == "__main__":
    ap = argparse.ArgumentParser()
    ap.add_argument("--waves", type=int, default=8)
    ap.add_argument("-G", type=int, default=1)
    ap.add_argument("--stamps", type=int, default=0)
    ap.add_argument("--amp", default="0,6,8")
    ap.add_argument("--hint", default="")
    ap.add_argument("--depth", type=int, default=99)
    ap.add_argument("--cl", type=int, default=0)
    ap.add_argument("--ct", type=int, default=0)
    ap.add_argument("--defer", type=int, default=0)
    ap.add_argument("--smul", type=int, default=0)
    ap.add_argument("--remap", type=int, default=0)
    ap.add_argument("--sthint", default="")
    ap.add_argument("--waitst", type=int, default=0)
    ap.add_argument("-o", default="/dev/stdout")
    a = ap.parse_args()
    open(a.o, "w").write(gen(a.waves, a.G, a.stamps, tuple(int(x) for x in a.amp.split(",")), a.hint, depth=a.depth, cheapload=a.cl, cheaptail=a.ct, defer=a.defer, smul=a.smul, remap=a.remap, sthint=a.sthint, waitst=a.waitst))
```
